```python
import torch

def _softmax(x, axis=-1):
    return torch.softmax(x, dim=axis)
def _gelu(x):
    return torch.nn.functional.gelu(x, approximate="tanh")
def _silu(x):
    return torch.nn.functional.silu(x)
def _sigmoid(x):
    return torch.sigmoid(x)
def _layernorm(x, axis=-1, eps=1e-5):
    m = x.mean(dim=axis, keepdim=True)
    v = x.var(dim=axis, keepdim=True, unbiased=False)
    return (x - m) / torch.sqrt(v + eps)
def _scatter_add(tgt, idx, src, axis=0):
    return tgt.clone().index_add_(axis, idx, src)
def _segment_sum(src, seg, n):
    out = torch.zeros((n,) + src.shape[1:], dtype=src.dtype)
    return out.index_add_(0, seg, src)
def _pad(x, pw):
    flat = tuple(v for pair in reversed(pw) for v in pair)
    return torch.nn.functional.pad(x, flat)

kernel_name = 'standalone__detection_seg_mask2former__vision'

def setup_inputs():

    _w = (lambda a: (lambda t: t.to(torch.bfloat16) if t.is_floating_point() else t)(torch.as_tensor(a)))
    H = W = 256
    C = 384
    Hc, Wc = H // 2, W // 2
    nh = 4
    Nq = 16
    sc = C ** -0.5
    return {
        "q": _w((lambda *s: torch.randn(*s, dtype=torch.bfloat16) * 0.2)(1, Nq, C)),
        "f_hi": _w((lambda *s: torch.randn(*s, dtype=torch.bfloat16) * 0.2)(1, H, W, C)),
        "f_lo": _w((lambda *s: torch.randn(*s, dtype=torch.bfloat16) * 0.4)(1, Hc, Wc, C)),
        "w_lat": _w((lambda *s: torch.randn(*s, dtype=torch.bfloat16) * 0.4)(C, C) * sc),
        "w_q": _w((lambda *s: torch.randn(*s, dtype=torch.bfloat16) * 3.2)(nh, C, C // nh) * sc),
        "w_k": _w((lambda *s: torch.randn(*s, dtype=torch.bfloat16) * 3.2)(nh, C, C // nh) * sc),
        "w_v": _w((lambda *s: torch.randn(*s, dtype=torch.bfloat16) * 3.2)(nh, C, C // nh) * sc),
        "w_o": _w((lambda *s: torch.randn(*s, dtype=torch.bfloat16) * 3.2)(C, C) * sc),
        "w_m": _w((lambda *s: torch.randn(*s, dtype=torch.bfloat16) * 1.6)(C, C) * sc),
    }

def reference(q, f_hi, f_lo, w_lat, w_q, w_k, w_v, w_o, w_m):
    B, Nq, C = q.shape
    _, H, W, _ = f_hi.shape
    nh = w_q.shape[0]
    dh = C // nh
    up = (lambda x, n, axis: torch.repeat_interleave(x, n, dim=axis))((lambda x, n, axis: torch.repeat_interleave(x, n, dim=axis))(f_lo, 2, axis=1), 2, axis=2)
    feat = f_hi + up @ w_lat
    feat = _layernorm(feat, axis=-1)
    kv = feat.reshape(B, H * W, C)
    m_embed = q @ w_m
    mask_bias = torch.einsum('bqc,bkc->bqk', m_embed, kv) * (C ** -0.5)
    Q = torch.einsum('bqc,hcd->bhqd', q, w_q)
    K = torch.einsum('bkc,hcd->bhkd', kv, w_k)
    V = torch.einsum('bkc,hcd->bhkd', kv, w_v)
    logits = torch.einsum('bhqd,bhkd->bhqk', Q, K) * (dh ** -0.5)
    logits = logits + mask_bias[:, None, :, :]
    attn = _softmax(logits, axis=-1)
    ctx = torch.einsum('bhqk,bhkd->bqhd', attn, V).reshape(B, Nq, C)
    return q + ctx @ w_o
```

```python
import re

class R:
    __slots__ = ('k', 'i', 'n', 'mod')
    def __init__(self, k, i, n=1, mod=''):
        self.k, self.i, self.n, self.mod = k, i, n, mod
        lim = {'v': 256, 'a': 256, 's': 102}[k]
        assert 0 <= i and i + n <= lim, (k, i, n)
        if n > 1 and k in 'va': assert i % 2 == 0, ('unaligned tuple', k, i, n)
        if n == 2 and k == 's': assert i % 2 == 0
        if n >= 4 and k == 's': assert i % 4 == 0
    def __str__(self):
        b = f'{self.k}{self.i}' if self.n == 1 else f'{self.k}[{self.i}:{self.i+self.n-1}]'
        if self.mod == '-': return '-' + b
        if self.mod == 'abs': return f'abs({b})'
        return b
    __repr__ = __str__
    def regs(self): return {(self.k, self.i + j) for j in range(self.n)}
    def __getitem__(self, j):
        if isinstance(j, slice):
            st = j.start or 0
            return R(self.k, self.i + st, j.stop - st)
        assert 0 <= j < self.n
        return R(self.k, self.i + j)
    def __neg__(self): return R(self.k, self.i, self.n, '-')

def v(i, n=1): return R('v', i, n)
def a(i, n=1): return R('a', i, n)
def s(i, n=1): return R('s', i, n)

VCC = {('x', 'vcc')}
EXEC = {('x', 'exec')}
M0 = {('x', 'm0')}
SCC = {('x', 'scc')}

def regset(ops):
    out = set()
    for o in ops:
        if isinstance(o, R): out |= o.regs()
        elif isinstance(o, str):
            if o == 'vcc': out |= VCC
            elif o == 'exec': out |= EXEC
            elif o == 'm0': out |= M0
    return out

TRANS = ('v_exp_f32', 'v_log_f32', 'v_rcp_f32', 'v_rsq_f32', 'v_sqrt_f32')

class Ins:
    __slots__ = ('text', 'kind', 'rd', 'wr', 'tag', 'srcc', 'passes', 'extra')
    def __init__(self, text, kind, rd=(), wr=(), tag=None, srcc=(), passes=0, extra=None):
        self.text, self.kind, self.rd, self.wr, self.tag = text, kind, set(rd), set(wr), tag
        self.srcc, self.passes, self.extra = set(srcc), passes, extra

def fmt(x):
    if isinstance(x, float):
        import struct
        if x in (0.5, 1.0, 2.0, 4.0, -0.5, -1.0, -2.0, -4.0): return repr(x)
        if x == 0.0: return '0'
        return '0x%08x' % struct.unpack('<I', struct.pack('<f', x))[0]
    if isinstance(x, int):
        return str(x) if -16 <= x <= 64 else ('0x%x' % (x & 0xffffffff))
    return str(x)

def valu(op, dst, *src, mods='', rmw=False):
    kind = 'trans' if op in TRANS else 'valu'
    rd = regset(src); wr = regset([dst])
    if rmw or op.startswith('v_fmac') : rd |= regset([dst])
    if op.startswith('v_cndmask') and len(src) == 2:
        rd |= VCC; text = f'{op} {dst}, {fmt(src[0])}, {fmt(src[1])}, vcc'
    else:
        text = f'{op} {dst}, ' + ', '.join(fmt(x) for x in src)
    extra = None
    if 'row_' in mods or 'quad_perm' in mods:
        extra = 'dpp'
        if 'row_mask' not in mods: mods += ' row_mask:0xf bank_mask:0xf'
    if mods: text += ' ' + mods
    return Ins(text, kind, rd, wr, extra=extra)

def permswap(op, x, y):
    return Ins(f'{op} {x}, {y}', 'valu', regset([x, y]), regset([x, y]), extra='permlane')

def readfirstlane(sd, vs):
    return Ins(f'v_readfirstlane_b32 {sd}, {vs}', 'valu', regset([vs]), regset([sd]), extra='readlane')

def readlane(sd, vs, lane):
    return Ins(f'v_readlane_b32 {sd}, {vs}, {fmt(lane)}', 'valu', regset([vs, lane]), regset([sd]), extra='readlane')

def salu(op, dst, *src):
    rd = regset(src); wr = regset([dst]) if dst is not None else set()
    if op.startswith('s_cmp') or op.startswith('s_bitcmp'):
        text = f'{op} ' + ', '.join(fmt(x) for x in ((dst,) + src)); rd = regset((dst,) + src); wr = set(SCC)
    else:
        text = f'{op} {dst}, ' + ', '.join(fmt(x) for x in src)
        if 'saveexec' in op: wr |= EXEC; rd |= EXEC
    return Ins(text, 'salu', rd, wr)

def mfma16(d, A, B, c):
    cc = c if isinstance(c, R) else None
    return Ins(f'v_mfma_f32_16x16x32_bf16 {d}, {A}, {B}, {fmt(c)}', 'mfma', regset([A, B, c]), regset([d]),
               srcc=regset([c]) if cc else (), passes=4, extra=(d.k, d.i, d.n, cc is not None and (cc.k, cc.i, cc.n) == (d.k, d.i, d.n)))

def mfma32(d, A, B, c):
    cc = c if isinstance(c, R) else None
    return Ins(f'v_mfma_f32_32x32x16_bf16 {d}, {A}, {B}, {fmt(c)}', 'mfma', regset([A, B, c]), regset([d]),
               srcc=regset([c]) if cc else (), passes=8, extra=(d.k, d.i, d.n, cc is not None and (cc.k, cc.i, cc.n) == (d.k, d.i, d.n)))

def ds_read(op, dst, addr, off=0, tag=None):
    assert 0 <= off < 65536, off
    return Ins(f'{op} {dst}, {addr}' + (f' offset:{off}' if off else ''), 'ds_read', regset([addr]), regset([dst]), tag=tag)

def ds_write(op, addr, data, off=0, tag=None):
    assert 0 <= off < 65536, off
    return Ins(f'{op} {addr}, {data}' + (f' offset:{off}' if off else ''), 'ds_write', regset([addr, data]), set(), tag=tag)

def ds_bperm(dst, addr, src, tag=None):
    return Ins(f'ds_bpermute_b32 {dst}, {addr}, {src}', 'ds_read', regset([addr, src]), regset([dst]), tag=tag)

def bload(op, dst, voff, srd, soff, off=0, flags='', tag=None):
    assert 0 <= off < 4096, off
    t = f'{op} {dst}, {voff}, {srd}, {fmt(soff)} offen' + (f' offset:{off}' if off else '') + (f' {flags}' if flags else '')
    return Ins(t, 'vm_load', regset([voff, srd, soff]), regset([dst]), tag=tag)

def bload_lds(voff, srd, soff, off=0, flags='', tag=None):
    assert 0 <= off < 4096, off
    t = f'buffer_load_dwordx4 {voff}, {srd}, {fmt(soff)} offen' + (f' offset:{off}' if off else '') + (f' {flags}' if flags else '') + ' lds'
    return Ins(t, 'vm_dma', regset([voff, srd, soff]) | M0, set(), tag=tag)

def bstore(op, data, voff, srd, soff, off=0, flags='', tag=None):
    assert 0 <= off < 4096, off
    t = f'{op} {data}, {voff}, {srd}, {fmt(soff)} offen' + (f' offset:{off}' if off else '') + (f' {flags}' if flags else '')
    return Ins(t, 'vm_store', regset([data, voff, srd, soff]), set(), tag=tag, extra=('wide', data.regs()) if data.n >= 3 else None)

def batomic(op, data, voff, srd, soff, off=0, flags='', ret=False, tag=None):
    t = f'{op} {data}, {voff}, {srd}, {fmt(soff)} offen' + (f' offset:{off}' if off else '') + (f' {flags}' if flags else '')
    return Ins(t, 'vm_load' if ret else 'vm_store', regset([data, voff, srd, soff]), regset([data]) if ret else set(), tag=tag)

def gload(op, dst, vaddr, off=0, tag=None):
    return Ins(f'{op} {dst}, {vaddr}, off' + (f' offset:{off}' if off else ''), 'vm_load', regset([vaddr]), regset([dst]), tag=tag)

def smem(op, dst, base, off):
    return Ins(f'{op} {dst}, {base}, {fmt(off)}', 'smem', regset([base]), regset([dst]))

def raw(text, kind='other', rd=(), wr=()):
    return Ins(text, kind, regset(rd), regset(wr))

class WaitVM:
    def __init__(self, tag): self.tag = tag
class WaitLG:
    def __init__(self, tag=None): self.tag = tag
class Barrier: pass

class Asm:
    def __init__(self):
        self.out = []
        self.clock = 0
        self.vm = []
        self.lg = []
        self.ev = {}
        self.nops = 0
        self.count = 0
    def line(self, t):
        self.out.append(t)
    def comment(self, t): self.out.append('    ; ' + t)
    def label(self, name): self.out.append(name + ':')
    def _tick(self, n=1): self.clock += n
    def nop(self, n):
        while n > 0:
            k = min(n, 16)
            self.out.append(f'    s_nop {k-1}'); self._tick(k); n -= k; self.nops += 1
    def _waitcnt(self, vm=None, lg=None):
        t = 's_waitcnt'
        if vm is not None:
            t += f' vmcnt({vm})'; self.vm = self.vm[len(self.vm) - vm:] if vm else []
        if lg is not None:
            t += f' lgkmcnt({lg})'; self.lg = self.lg[len(self.lg) - lg:] if lg else []
        self.out.append('    ' + t); self._tick()
    def wait_vm(self, tag=None, also_lg=False):
        if tag is None: idx = len(self.vm) - 1
        else:
            idx = max([i for i, e in enumerate(self.vm) if e[0] == tag], default=-1)
        if idx < 0:
            if also_lg and self.lg: self._waitcnt(lg=0)
            return
        n = len(self.vm) - 1 - idx
        self._waitcnt(vm=min(n, 63), lg=0 if (also_lg and self.lg) else None)
    def wait_lg(self, tag=None):
        if tag is None: idx = len(self.lg) - 1
        else: idx = max([i for i, e in enumerate(self.lg) if e[0] == tag], default=-1)
        if idx < 0: return
        n = len(self.lg) - 1 - idx
        if any(e[2] for e in self.lg): n = 0
        self._waitcnt(lg=min(n, 15))
    def barrier(self, drain_lds=True):
        if drain_lds:
            if self.lg: self._waitcnt(lg=0)
        self.out.append('    s_barrier'); self._tick()
    def flush_hazards(self, n=16):
        self.nop(n); self.ev = {}
    def reset_state(self, vm=(), lg=()):
        self.vm = list(vm); self.lg = list(lg); self.ev = {}
    def _need(self, ins):
        need = 0
        def since(c): return self.clock - c
        k = ins.kind
        is_valu = k in ('valu', 'trans')
        is_mem = k in ('ds_read', 'ds_write', 'vm_load', 'vm_store', 'vm_dma')
        for r in ins.rd:
            for (t, c, p, info) in self.ev.get(r, ()):
                w = 0
                if t == 'valu_w':
                    if r[0] in 'va':
                        if k == 'mfma': w = 2
                        elif ins.extra == 'dpp' or ins.extra == 'permlane': w = 2
                        elif ins.extra == 'readlane': w = 1
                        if info == 'trans' and is_valu and k != 'trans': w = max(w, 1)
                        if info == 'trans' and k == 'trans': w = max(w, 1)
                    else:
                        if is_valu: w = 4 if ins.extra == 'readlane' else 2
                        elif k.startswith('vm'): w = 5
                        elif k == 'salu' or k == 'other': w = 1
                elif t == 'mfma_w':
                    if k == 'mfma':
                        if r in ins.srcc:
                            same = ins.extra[3] and info == ins.extra[:3] and p == ins.passes
                            w = 0 if same else {4: 6, 8: 10}[p]
                            if r in (ins.rd - ins.srcc): w = {4: 8, 8: 12}[p]
                        else: w = {4: 8, 8: 12}[p]
                    else: w = {4: 8, 8: 12}[p]
                elif t == 'salu_w':
                    if r == ('x', 'm0') and k == 'vm_dma': w = 1
                need = max(need, w - since(c))
        for r in ins.wr:
            for (t, c, p, info) in self.ev.get(r, ()):
                w = 0
                if t == 'mfma_w':
                    if k == 'mfma':
                        same = ins.extra[3] and info == ins.extra[:3] and p == ins.passes
                        w = 0 if same else {4: 8, 8: 12}[p]
                    else: w = {4: 8, 8: 12}[p]
                elif t == 'mfma_c' and (is_valu or is_mem):
                    w = {4: 3, 8: 7}[p]
                elif t == 'store_data' and (is_valu or k in ('ds_read', 'vm_load', 'mfma')):
                    w = 2
                need = max(need, w - since(c))
        return need
    def _record(self, ins):
        k = ins.kind; c = self.clock
        def add(r, e, replace):
            l = self.ev.setdefault(r, [])
            l[:] = [x for x in l if x[0] not in replace and self.clock - x[1] < 24]
            l.append(e)
        if k in ('valu', 'trans'):
            for r in ins.wr: add(r, ('valu_w', c, 0, 'trans' if k == 'trans' else None), ('valu_w',))
        elif k == 'mfma':
            for r in ins.wr: add(r, ('mfma_w', c, ins.passes, ins.extra[:3]), ('mfma_w', 'valu_w'))
            for r in ins.srcc: add(r, ('mfma_c', c, ins.passes, None), ('mfma_c',))
        elif k == 'salu':
            for r in ins.wr: add(r, ('salu_w', c, 0, None), ('salu_w', 'valu_w'))
        elif k == 'vm_store' and ins.extra:
            for r in ins.extra[1]: add(r, ('store_data', c, 0, None), ('store_data',))
    def emit(self, ins):
        if isinstance(ins, (list, tuple)):
            for x in ins: self.emit(x)
            return
        if isinstance(ins, WaitVM): return self.wait_vm(ins.tag)
        if isinstance(ins, WaitLG): return self.wait_lg(ins.tag)
        if isinstance(ins, Barrier): return self.barrier()
        if callable(ins): return ins(self)
        touched = ins.rd | ins.wr
        vi = max([i for i, e in enumerate(self.vm) if e[1] & touched], default=-1)
        li = max([i for i, e in enumerate(self.lg) if e[1] & touched], default=-1)
        if vi >= 0 or li >= 0:
            vmn = min(len(self.vm) - 1 - vi, 63) if vi >= 0 else None
            lgn = None
            if li >= 0:
                lgn = len(self.lg) - 1 - li
                if any(e[2] for e in self.lg): lgn = 0
                lgn = min(lgn, 15)
            self._waitcnt(vm=vmn, lg=lgn)
        n = self._need(ins)
        if n > 0: self.nop(n)
        self.out.append('    ' + ins.text); self.count += 1
        self._tick()
        self._record(ins)
        if ins.kind in ('vm_load', 'vm_store', 'vm_dma'):
            self.vm.append((ins.tag, ins.wr if ins.kind == 'vm_load' else set()))
            assert len(self.vm) <= 63 + 64, 'vm queue tracking too long'
        elif ins.kind in ('ds_read', 'ds_write'):
            self.lg.append((ins.tag, ins.wr, False))
        elif ins.kind == 'smem':
            self.lg.append((None, ins.wr, True))
    def __call__(self, *ins):
        for x in ins: self.emit(x)
    def text(self): return '\n'.join(self.out) + '\n'

def interleave(main, fill):
    out = list(fill.get(-1, []))
    for i, m in enumerate(main):
        out.append(m)
        out.extend(fill.get(i, []))
    for k in sorted(fill):
        if k >= len(main): out.extend(fill[k])
    return out

def spread(fill, seq, start, per=1, step=1):
    sl = start; j = 0
    while j < len(seq):
        fill.setdefault(sl, []).extend(seq[j:j + per]); j += per; sl += step
    return sl
```

```python
import sys, math, argparse
from asmlib import *

KN = 'standalone__detection_seg_mask2former__vision_kernel'
LOG2E = 1.4426950408889634
S1 = 96 ** -0.5 * LOG2E
S2 = 384 ** -0.5 * LOG2E
THR = 30.0

S0, MISC, SL1, R0 = 0, 49152, 65536, 114688
PH = MISC; PL = PH + 8192; RR = PL + 4096; RM = RR + 256; ONES = RM + 256; AL = ONES + 768
FL = AL + 256; CNT = FL + 64; DUM = FL + 256; MEMB = DUM + 512
MLM = RR; MLL = RM; OUTR = ONES
STAMP = MISC + 16128
assert MEMB + 1024 <= STAMP and ONES % 256 == 0
LDS_BYTES = 163840
WS_A = 0; WS_V = 65536; WS_TAB = 0x60000; WS_MA = 0x100000; WS_MB = 0x500000; WS_DUMP = 0x1000000; WS_STAMP = 0x8000000
WS_BYTES = 268435456
DB_A = 32; DB_V = 36; DB_EP = 37

sW = s(3); sB = s(2)
sT = [s(i) for i in range(4, 8)]
SRD_HI = s(8, 4); SRD_LO = s(12, 4); SRD_WL = s(16, 4); SRD_WS = s(20, 4); SRD_DB = s(24, 4)
SRD_X = s(28, 4); SRD_Y = s(32, 4); SRD_Z = s(36, 4)
sHI = s(40)
sSO = s(41); sSO2 = s(42)
sWB = s(43)
sEP = s(44); sTAG = s(45); sXCC = s(46); sN = s(47); sRANK = s(48); sGM = s(49)
sM = s(50, 2); sM2 = s(52, 2); sSV = s(54, 2); sCNT = s(56); sROLE = s(57); sP0 = s(58); sP1 = s(59)
sST = 60
PQ, PHI, PLO, PWL, PWQ, PWK, PWV, PWO = [s(64 + 2 * i, 2) for i in range(8)]
PWM, POUT, PDB, PWS = [s(80 + 2 * i, 2) for i in range(4)]
sK = [s(i) for i in range(88, 100)]

vTID = v(0); vL = v(1)
XG = [v(2 + i) for i in range(6)]
XA = [v(8 + i) for i in range(4)]
XO = [v(12 + i) for i in range(4)]
XT = [v(16 + i) for i in range(6)]
XW = v(22)
CA = [v(23 + i) for i in range(4)]
PHW = [v(27 + i) for i in range(4)]
PHR = [v(31 + i) for i in range(4)]
PLW = v(35); CD = v(36); T0 = v(37); T1 = v(38)
PLR = [v(39), v(40)]
RRD = v(41); RWR = v(42)
LT = [v(43 + i) for i in range(6)]
LIN = v(49)
SLO = [v(50 + 4 * i, 4) for i in range(4)]
LSQ = v(66, 4); LSM = v(70, 4)
MREF = v(74); LSUM = v(75); SUMA = v(76); EMAX = v(77)
POOL = [[v(78 + 2 * g), v(79 + 2 * g)] for g in range(4)]
LST = v(86); T2 = v(87)
RING = [v(88 + 4 * i, 4) for i in range(8)]
SACC = [v(120 + 4 * i, 4) for i in range(4)]
GA = v(136, 4); CX = v(140, 4)
RB = [(v(144, 4), v(148, 4)), (v(152, 4), v(156, 4))]
UACC = [[v(160 + 16 * (2 * ct + nu), 16) for nu in range(2)] for ct in range(3)]
LACC = [[v(160 + 4 * (6 * mu + j), 4) for j in range(6)] for mu in range(4)]
WF = [[v(56 + 24 * b + 4 * j, 4) for j in range(6)] for b in range(2)]
FF = [[v(104 + 16 * b + 4 * m, 4) for m in range(4)] for b in range(2)]
FA = [v(144 + i) for i in range(4)]
WD = [v(148 + i) for i in range(3)]
WA = v(151); WB = v(152)
FDB = v(153)
AFR = [a(4 * i, 4) for i in range(12)]
STG = [[a(48 + 48 * b + 4 * i, 4) for i in range(12)] for b in range(4)]
SPARE = [a(240 + 4 * i, 4) for i in range(4)]


def srd(A, dst, ptr, nbytes):
    A(salu('s_mov_b32', dst[0], ptr[0]), salu('s_and_b32', dst[1], ptr[1], 0xffff),
      salu('s_mov_b32', dst[2], nbytes), salu('s_mov_b32', dst[3], 0x20000))


class Gen:
    def __init__(self, o):
        self.o = o
        self.A = Asm()
        self.tail = []
        self.uid = 0
        self.nstamp = 0

    def lab(self, p):
        self.uid += 1
        return f'L_{p}_{self.uid}'

    def stamp(self, A=None):
        if not self.o.stamps: return
        A = A or self.A
        i = self.nstamp; self.nstamp += 1
        assert i < 16
        A.line(f'    s_memrealtime s[60:61]')
        A.line(f'    s_lshl_b32 s62, s3, 6')
        A.line(f'    s_waitcnt lgkmcnt(0)'); A.lg = []
        A.line(f'    v_mov_b32 {T1}, s60')
        A.line(f'    v_mov_b32 {T2}, s62')
        A.line(f'    ds_write_b32 {T2}, {T1} offset:{STAMP + 4 * i}')
        A.line(f'    s_waitcnt lgkmcnt(0)')
        A.clock += 7

    def stamp_out(self):
        if not self.o.stamps: return
        A = self.A
        l = self.lab('nst')
        A.wait_vm()
        A(salu('s_cmp_lg_u32', sW, self.o.stampw)); A.line(f'    s_cbranch_scc1 {l}')
        A(valu('v_lshlrev_b32', T0, 2, vL), salu('s_lshl_b32', sT[0], sW, 6), valu('v_add_u32', T0, sT[0], T0), ds_read('ds_read_b32', v(160), T0, STAMP),
          valu('v_mov_b32', v(161), 0), valu('v_lshlrev_b32', T0, 3, vL),
          salu('s_lshl_b32', sT[0], sB, 7), salu('s_add_u32', sT[0], sT[0], WS_STAMP), salu('s_mov_b64', 'exec', 0xffff))
        A(bstore('buffer_store_dwordx2', v(160, 2), T0, SRD_WS, sT[0]))
        A(salu('s_mov_b64', 'exec', -1))
        A.wait_vm()
        A.label(l)

    def dump_lds(self, base, nbytes):
        A = self.A
        A.wait_vm(); A.barrier()
        A(valu('v_lshlrev_b32', T0, 4, vTID), salu('s_mul_i32', sT[0], sB, nbytes), salu('s_add_u32', sT[0], sT[0], WS_DUMP))
        A(valu('v_add_u32', T1, base, T0))
        for i in range(nbytes // 4096):
            A(ds_read('ds_read_b128', RING[0], T1, 0), bstore('buffer_store_dwordx4', RING[0], T0, SRD_WS, sT[0]),
              salu('s_add_u32', sT[0], sT[0], 4096), valu('v_add_u32', T1, 4096, T1))
            A.wait_vm()
        A.line('    s_endpgm')

    def dump_regs(self, regs):
        A = self.A
        A.wait_vm(); A.wait_lg(); A.flush_hazards()
        n = len(regs)
        A(valu('v_lshlrev_b32', T0, 2, vTID), salu('s_mul_i32', sT[0], sB, n * 1024), salu('s_add_u32', sT[0], sT[0], WS_DUMP))
        for r in regs:
            if r.k == 'a':
                A(valu('v_accvgpr_read_b32', T1, r)); r = T1
            A(bstore('buffer_store_dword', r, T0, SRD_WS, sT[0]), salu('s_add_u32', sT[0], sT[0], 1024))
            A.wait_vm()
        A.line('    s_endpgm')

    def allreduce_g(self, A, op, x, t):
        A(valu('v_mov_b32', t, x), permswap('v_permlane16_swap_b32', t, x), valu(op, x, x, t),
          valu('v_mov_b32', t, x), permswap('v_permlane32_swap_b32', t, x), valu(op, x, x, t))

    def spin_guard(self, A, label_retry):
        A(salu('s_add_u32', sCNT, sCNT, 1), salu('s_cmp_lt_u32', sCNT, 400000))
        A.line(f'    s_cbranch_scc1 {label_retry}')

    def prologue(self):
        A = self.A; o = self.o
        A.line(f'.globl {KN}\n.p2align 8\n.type {KN},@function\n{KN}:')
        A(salu('s_cmp_ge_u32', sB, 256)); A.line('    s_cbranch_scc1 L_end')
        A(smem('s_load_dwordx16', s(64, 16), s(0, 2), 0), smem('s_load_dwordx8', s(80, 8), s(0, 2), 64))
        A(valu('v_and_b32', vL, 63, vTID), valu('v_lshrrev_b32', T0, 6, vTID), readfirstlane(sW, T0),
          valu('v_lshlrev_b32', LIN, 4, vL), salu('s_mov_b32', sCNT, 0))
        A.nop(1)
        self.stamp()
        l = self.lab('cp')
        A(salu('s_cmp_lg_u32', sW, 2)); A.line(f'    s_cbranch_scc1 {l}')
        A.line('    s_getpc_b64 s[4:5]\nL_pc:')
        A.line(f'    s_lshr_b32 s6, s2, 3\n    s_mul_i32 s6, s6, {o.pf_lines}\n    v_min_u32 v56, {o.pf_lines - 1}, v1\n    v_add_u32 v56, s6, v56')
        A.line('    v_lshlrev_b32 v56, 7, v56\n    v_min_u32 v56, L_codeend-L_pc, v56\n    v_mov_b32 v57, s5\n    v_add_co_u32 v56, vcc, s4, v56')
        A.line('    s_nop 1\n    v_addc_co_u32 v57, vcc, 0, v57, vcc\n    global_load_dword v54, v[56:57], off')
        A.label(l)
        A.vm.append(('junk', v(54).regs()))
        RHO = [v(60 + i) for i in range(3)]; PP = [v(64 + i) for i in range(3)]
        for b in range(3):
            A(valu('v_add_u32', T0, 64 * b, vL), valu('v_mul_u32_u24', T1, 1366, T0), valu('v_lshrrev_b32', RHO[b], 16, T1),
              valu('v_mul_u32_u24', T1, 48, RHO[b]), valu('v_sub_u32', PP[b], T0, T1))
        self.RHO, self.PP = RHO, PP
        A.wait_lg()
        srd(A, SRD_LO, PLO, 12582912); srd(A, SRD_HI, PHI, 50331648); srd(A, SRD_WL, PWL, 294912)
        srd(A, SRD_WS, PWS, WS_BYTES); srd(A, SRD_DB, PDB, 256)
        A(valu('v_min_u32', T0, 71, vTID), valu('v_lshlrev_b32', T0, 7, T0), salu('s_lshr_b32', sT[0], sB, 3),
          salu('s_mul_i32', sT[0], sT[0], 9216))
        l = self.lab('nw')
        A(salu('s_cmp_ge_u32', sW, 2)); A.line(f'    s_cbranch_scc1 {l}')
        A.line(f'    buffer_load_dword v59, {T0}, {SRD_WL}, {sT[0]} offen')
        A.label(l)
        A.vm.append(('junk', v(59).regs()))
        l = self.lab('ep')
        A(salu('s_or_b32', sT[0], sB, sW), salu('s_cmp_lg_u32', sT[0], 0)); A.line(f'    s_cbranch_scc1 {l}')
        A.line('    s_memrealtime s[6:7]\n    s_waitcnt lgkmcnt(0)\n    s_or_b32 s6, s6, 1\n    v_mov_b32 v58, s6\n    v_mov_b32 v55, 0')
        A.line(f'    s_mov_b64 exec, 1\n    buffer_store_dword v58, v55, {SRD_DB}, 0 offen offset:{DB_EP*4} sc1\n    s_mov_b64 exec, -1')
        A.label(l)
        A.vm.append(('junk', set()))
        A.ev = {}
        self.VF = [v(68 + i) for i in range(3)]
        self.GP = [v(72 + i) for i in range(3)]
        for b in range(3):
            A(valu('v_and_b32', T0, 1, RHO[b]), valu('v_lshlrev_b32', T0, 2, T0), valu('v_and_b32', T1, 2, RHO[b]),
              valu('v_or_b32', T0, T0, T1), valu('v_xor_b32', T0, T0, PP[b]), valu('v_lshlrev_b32', self.GP[b], 4, T0),
              valu('v_mul_u32_u24', T1, 12288, RHO[b]), valu('v_add_u32', self.VF[b], T1, self.GP[b]))
        self.role()

    def flo_dma(self):
        A = self.A
        FAx = [0, 9, 8, 1]
        A(salu('s_mul_i32', sSO, sB, 49152), salu('s_mul_i32', sT[0], sW, 3072), salu('s_add_u32', sSO, sSO, sT[0]),
          salu('s_mul_i32', sT[1], sW, 12288), salu('s_add_u32', sT[1], sT[1], R0))
        for aa in range(4):
            for b in range(3):
                i = 3 * aa + b
                src = self.VF[b]
                if FAx[aa]:
                    A(valu('v_xor_b32', T0, 16 * FAx[aa], self.VF[b])); src = T0
                A(salu('s_add_u32', 'm0', sT[1], i * 1024))
                A(bload_lds(src, SRD_LO, sSO, 0, 'nt', tag='flo'))
            A(salu('s_add_u32', sSO, sSO, 768))

    def addr_setup1(self):
        A = self.A; RHO, PP = self.RHO, self.PP
        A(salu('s_mov_b32', sK[0], 196608))
        for b in range(3):
            A(valu('v_lshlrev_b32', T0, 2, RHO[b]), valu('v_xor_b32', T0, T0, PP[b]), valu('v_lshlrev_b32', T0, 4, T0),
              valu('v_and_b32', T1, 1, RHO[b]), valu('v_mul_u32_u24', T1, 768, T1), valu('v_add_u32', T0, T0, T1),
              valu('v_lshrrev_b32', T1, 1, RHO[b]), valu('v_mul_lo_u32', T1, T1, sK[0]), valu('v_add_u32', XG[b], T0, T1),
              valu('v_xor_b32', XG[3 + b], 32, XG[b]))
        A(salu('s_lshr_b32', sT[0], sB, 1), salu('s_mul_i32', sHI, sT[0], 393216), salu('s_and_b32', sT[0], sB, 1),
          salu('s_mul_i32', sT[0], sT[0], 98304), salu('s_add_u32', sHI, sHI, sT[0]), salu('s_mul_i32', sT[0], sW, 6144),
          salu('s_add_u32', sHI, sHI, sT[0]))

    def wd_setup(self, rowstride, dst, colw):
        A = self.A
        for b in range(3):
            A(valu('v_add_u32', T0, 64 * b, vL), valu('v_mul_u32_u24', T1, 5462, T0), valu('v_lshrrev_b32', T1, 16, T1),
              valu('v_mul_u32_u24', T2, 12, T1), valu('v_sub_u32', T0, T0, T2),
              valu('v_lshrrev_b32', T2, 2, T1), valu('v_and_b32', T2, 2, T2), valu('v_xor_b32', T0, T0, T2),
              valu('v_lshlrev_b32', T0, 4, T0), valu('v_mul_u32_u24', T1, rowstride, T1), valu('v_add_u32', dst[b], T0, T1))
        if colw:
            A(salu('s_mul_i32', sT[0], sW, 192))
            for b in range(3): A(valu('v_add_u32', dst[b], sT[0], dst[b]))

    def wtr_setup(self, wa, wb):
        A = self.A
        A(valu('v_lshrrev_b32', T0, 4, vL), valu('v_lshlrev_b32', T1, 3, T0), valu('v_bfe_u32', T2, vL, 2, 2),
          valu('v_add_u32', T1, T1, T2), valu('v_mul_u32_u24', T1, 192, T1), valu('v_and_b32', T2, 3, vL),
          valu('v_lshl_add_u32', T1, T2, 3, T1), valu('v_and_b32', T0, 1, T0), valu('v_lshlrev_b32', T0, 5, T0),
          valu('v_add_u32', wa, T1, T0), valu('v_sub_u32', wb, T1, T0))

    def fa_setup(self, dst, base):
        A = self.A
        A(valu('v_and_b32', T0, 15, vL),
          valu('v_lshrrev_b32', T1, 2, T0), valu('v_lshrrev_b32', T2, 3, T0), valu('v_xor_b32', T2, T1, T2),
          valu('v_and_b32', T2, 1, T2), valu('v_lshlrev_b32', T2, 3, T2), valu('v_and_b32', T1, 1, T1), valu('v_or_b32', T2, T2, T1),
          valu('v_and_b32', T1, 1, T0), valu('v_lshl_or_b32', T2, T1, 2, T2), valu('v_and_b32', T1, 2, T0), valu('v_or_b32', T2, T2, T1),
          valu('v_lshrrev_b32', T1, 4, vL), valu('v_xor_b32', T2, T2, T1), valu('v_lshlrev_b32', T2, 4, T2),
          valu('v_mul_u32_u24', T0, 768, T0), valu('v_add_u32', T0, base, T0))
        for j in range(4):
            A(valu('v_xor_b32', T1, 64 * j, T2), valu('v_add_u32', dst[j], T0, T1))

    def x_loads(self, t, buf):
        L = []
        for g in range(4):
            L.append(salu('s_add_u32', sSO2, sHI, t * 16 * 1536 + g * 1536))
            for b in range(3):
                L.append(bload('buffer_load_dwordx4', STG[buf][3 * g + b], XG[3 * (g & 1) + b], SRD_HI, sSO2, 0, 'nt', tag=f'x{t}'))
        return L

    def w_dma(self, ks):
        L = []
        for aa in range(2):
            L.append(salu('s_mov_b32', sSO, (32 * ks + 16 * aa) * 768))
            for b in range(3):
                L.append(salu('s_add_u32', 'm0', sWB, (ks % 4) * 6144 + (3 * aa + b) * 1024))
                L.append(bload_lds(WD[b], SRD_WL, sSO, 0, '', tag=f'w{ks}'))
        return L

    def role(self):
        A = self.A; o = self.o
        A(salu('s_lshr_b32', sT[0], sB, 4), salu('s_lshl_b32', sT[0], sT[0], 3), salu('s_and_b32', sT[1], sB, 7),
          salu('s_add_u32', sROLE, sT[0], sT[1]), salu('s_bitcmp1_b32', sB, 3))
        A.line('    s_cbranch_scc0 L_early')
        A(salu('s_cmp_lt_u32', sROLE, 48)); A.line('    s_cbranch_scc1 L_prodA')
        A(salu('s_cmp_lt_u32', sROLE, 72)); A.line('    s_cbranch_scc1 L_prodV')
        st = (list(A.vm), list(A.lg))
        self.flo_dma(); self.addr_setup1()
        for t in range(o.npre_late): A(self.x_loads(t, t))
        A.line('    s_branch L_late')
        A.reset_state(*st); A.label('L_prodA'); self.prodA()
        A.line('    s_branch L_late')
        A.reset_state(*st); A.label('L_prodV'); self.prodV()
        A.line('    s_branch L_late')
        A.reset_state(*st); A.label('L_early'); self.flo_dma(); self.addr_setup1()
        ns = self.nstamp
        self.main(0, 'E')
        A.line('    s_branch L_tail')
        A.label('L_late')
        vm = [('flo', set())] * 12
        for t in range(o.npre_late): vm += [(f'x{t}', STG[t][i].regs()) for i in range(12)]
        A.reset_state(vm, [])
        self.nstamp = ns
        self.main(o.npre_late, 'L')
        A.label('L_tail')
        A.reset_state([], [])
        self.tail_phase()

    def publish(self, dword):
        A = self.A
        A.wait_vm(); A.barrier()
        l = self.lab('pub')
        A(salu('s_cmp_lg_u32', sW, 0)); A.line(f'    s_cbranch_scc1 {l}')
        A(valu('v_mov_b32', T0, 1), valu('v_mov_b32', T1, dword), valu('v_lshlrev_b32', T1, 2, T1), salu('s_mov_b64', 'exec', 1))
        A.line(f'    buffer_atomic_add {T0}, {T1}, {SRD_DB}, 0 offen sc1')
        A(salu('s_mov_b64', 'exec', -1))
        A.label(l)

    def prodA(self):
        A = self.A; o = self.o
        sH, sKS = sP0, sP1
        A(salu('s_mul_i32', sH, sROLE, 5462), salu('s_lshr_b32', sH, sH, 16), salu('s_mul_i32', sT[0], sH, 12),
          salu('s_sub_u32', sKS, sROLE, sT[0]))
        srd(A, SRD_X, PWQ, 294912); srd(A, SRD_Y, PWM, 294912); srd(A, SRD_Z, PQ, 12288)
        QD = [v(76 + i) for i in range(3)]
        self.wd_setup(192, QD, False)
        A(salu('s_mul_i32', sSO, sH, 73728), salu('s_mul_i32', sT[0], sW, 18432), salu('s_add_u32', sSO, sSO, sT[0]))
        for pc in range(3):
            A(salu('s_mul_i32', sT[0], sW, 3), salu('s_add_u32', sT[0], sT[0], pc), salu('s_mul_i32', sT[1], sT[0], 6144),
              salu('s_cmp_ge_u32', sT[0], 8), salu('s_cselect_b32', sT[2], 16384, 0), salu('s_add_u32', sT[1], sT[1], sT[2]))
            for aa in range(2):
                for b in range(3):
                    A(salu('s_add_u32', 'm0', sT[1], (3 * aa + b) * 1024), bload_lds(QD[b], SRD_X, sSO, 0, '', tag='pa'))
                A(salu('s_add_u32', sSO, sSO, 3072))
        MD = v(79)
        A(valu('v_lshrrev_b32', T0, 2, vL), valu('v_mul_u32_u24', T0, 768, T0), valu('v_and_b32', T1, 3, vL),
          valu('v_lshl_add_u32', MD, T1, 4, T0),
          salu('s_mul_i32', sSO, sW, 96 * 768), salu('s_lshl_b32', sT[0], sKS, 6), salu('s_add_u32', sSO, sSO, sT[0]),
          salu('s_mul_i32', sT[1], sW, 6144), salu('s_add_u32', sT[1], sT[1], 90112))
        for i in range(6):
            A(salu('s_add_u32', 'm0', sT[1], i * 1024), bload_lds(MD, SRD_Y, sSO, 0, '', tag='pa'), salu('s_add_u32', sSO, sSO, 16 * 768))
        A(salu('s_lshl_b32', sT[0], sW, 2), salu('s_lshr_b32', sT[0], 0x1890, sT[0]), salu('s_and_b32', sT[0], sT[0], 15),
          salu('s_lshl_b32', sT[0], sT[0], 4), salu('s_mul_i32', sSO, sW, 3072), salu('s_add_u32', sT[1], sSO, MISC))
        for b in range(3):
            A(valu('v_xor_b32', T0, sT[0], self.GP[b]), valu('v_mul_u32_u24', T1, 768, self.RHO[b]), valu('v_add_u32', T0, T0, T1),
              salu('s_add_u32', 'm0', sT[1], b * 1024), bload_lds(T0, SRD_Z, sSO, 0, '', tag='pa'))
        srd(A, SRD_X, PWK, 294912)
        WK = [[v(160 + 12 * tau + 4 * u, 4) for u in range(3)] for tau in range(2)]
        KD = v(104)
        A(valu('v_bfe_u32', T0, vL, 2, 2), valu('v_lshlrev_b32', T0, 3, T0), valu('v_and_b32', T1, 3, vL), valu('v_add_u32', T0, T0, T1),
          valu('v_mul_u32_u24', T0, 192, T0), valu('v_lshrrev_b32', T1, 4, vL), valu('v_lshl_add_u32', KD, T1, 3, T0),
          salu('s_mul_i32', sSO, sH, 73728), salu('s_mul_i32', sT[0], sKS, 32 * 192), salu('s_add_u32', sSO, sSO, sT[0]))
        for tau in range(2):
            for u in range(3):
                for e in range(2):
                    A(bload('buffer_load_dwordx2', WK[tau][u][2 * e:2 * e + 2], KD, SRD_X, sSO, tau * 768 + u * 64 + e * 32, tag='pa'))
        self.flo_dma(); self.addr_setup1()
        for t in range(o.npre_late): A(self.x_loads(t, t))
        QA, QB, QA2, QB2 = v(106), v(107), v(108), v(109)
        QF = [v(110 + i) for i in range(4)]
        self.wtr_setup(QA, QB); self.fa_setup(QF, MISC)
        A(salu('s_lshl_b32', sT[0], sW, 6), valu('v_add_u32', QA, sT[0], QA), valu('v_add_u32', QB, sT[0], QB),
          valu('v_add_u32', QA2, 65536, QA), valu('v_add_u32', QB2, 65536, QB))
        A.wait_vm('pa'); A.barrier()
        D = [v(116, 4), v(120, 4)]
        QQ = [v(124 + 4 * i, 4) for i in range(2)]; TT = [[v(132 + 8 * i + 4 * j, 4) for j in range(2)] for i in range(2)]
        lm = self.lab('pam'); lj = self.lab('paj')
        st = (list(A.vm), list(A.lg))
        A(salu('s_cmp_eq_u32', sW, 3)); A.line(f'    s_cbranch_scc1 {lm}')
        def gemm(rd):
            def reads(ks):
                return [ds_read('ds_read_b128', QQ[ks & 1], QF[ks & 3], (ks >> 2) * 256)] + rd(ks, TT[ks & 1])
            A(reads(0))
            for ks in range(12):
                if ks < 11: A(reads(ks + 1))
                for j in range(2): A(mfma16(D[j], TT[ks & 1][j], QQ[ks & 1], D[j] if ks else 0))
        def rdq(ks, T):
            L = []
            for j in range(2):
                ad = ((QA, QB) if ks < 8 else (QA2, QB2))[j]
                for r in range(2):
                    L.append(ds_read('ds_read_b64_tr_b16', T[j][2 * r:2 * r + 2], ad, (ks % 8) * 6144 + 32 * j + r * 768))
            return L
        gemm(rdq)
        QP = v(148, 4)
        for j in range(2):
            A(valu('v_cvt_pk_bf16_f32', QP[2 * j], D[j][0], D[j][1]), valu('v_cvt_pk_bf16_f32', QP[2 * j + 1], D[j][2], D[j][3]))
        A(salu('s_lshl_b32', sT[0], sW, 10), salu('s_add_u32', sT[0], sT[0], MISC + 12288), valu('v_add_u32', T0, sT[0], LIN),
          ds_write('ds_write_b128', T0, QP))
        A.barrier()
        A.line(f'    s_branch {lj}')
        A.reset_state(*st); A.label(lm)
        MA = v(105)
        A(valu('v_lshrrev_b32', T0, 4, vL), valu('v_lshlrev_b32', T0, 3, T0), valu('v_bfe_u32', T1, vL, 2, 2), valu('v_add_u32', T0, T0, T1),
          valu('v_lshlrev_b32', T0, 6, T0), valu('v_and_b32', T1, 3, vL), valu('v_lshl_add_u32', T0, T1, 4, T0),
          valu('v_add_u32', MA, 90112, T0))
        def rdm(ks, T):
            return [ds_read('ds_read_b64_tr_b16', T[j][2 * r:2 * r + 2], MA, ks * 2048 + r * 256 + 8 * j) for j in range(2) for r in range(2)]
        gemm(rdm)
        A.barrier()
        QX = [v(124 + 4 * i, 4) for i in range(3)]
        A(valu('v_add_u32', T0, MISC + 12288, LIN))
        for u in range(3): A(ds_read('ds_read_b128', QX[u], T0, u * 1024))
        E = [v(140, 4), v(144, 4)]
        for u in range(3):
            for tau in range(2): A(mfma16(E[tau], WK[tau][u], QX[u], E[tau] if u else 0))
        A(salu('s_mov_b32', sK[1], S1), salu('s_mov_b32', sK[2], S2))
        for tau in range(2):
            for i in range(4):
                A(valu('v_mul_f32', D[tau][i], sK[2], D[tau][i]))
        for tau in range(2):
            for i in range(4):
                A(valu('v_fma_f32', D[tau][i], E[tau][i], sK[1], D[tau][i]))
        for tau in range(2):
            A(valu('v_cvt_pk_bf16_f32', QP[2 * tau], D[tau][0], D[tau][1]), valu('v_cvt_pk_bf16_f32', QP[2 * tau + 1], D[tau][2], D[tau][3]))
        A(salu('s_lshl_b32', sT[0], sROLE, 10))
        A(bstore('buffer_store_dwordx4', QP, LIN, SRD_WS, sT[0], WS_A, 'sc1', tag='st'))
        A.wait_vm()
        A(valu('v_mov_b32', T0, 1), salu('s_add_u32', sT[0], sH, DB_A), salu('s_lshl_b32', sT[0], sT[0], 2), valu('v_mov_b32', T1, sT[0]),
          salu('s_mov_b64', 'exec', 1))
        A.line(f'    buffer_atomic_add {T0}, {T1}, {SRD_DB}, 0 offen sc1')
        A(salu('s_mov_b64', 'exec', -1))
        A.label(lj)
        A.lg = []
        A.line('    s_waitcnt lgkmcnt(0)\n    s_barrier')
        A.flush_hazards(8)

    def prodV(self):
        A = self.A; o = self.o
        sH, sJ = sP0, sP1
        A(salu('s_sub_u32', sT[0], sROLE, 48), salu('s_mul_i32', sH, sT[0], 10923), salu('s_lshr_b32', sH, sH, 16),
          salu('s_mul_i32', sT[1], sH, 6), salu('s_sub_u32', sJ, sT[0], sT[1]))
        srd(A, SRD_X, PWV, 294912)
        VD = v(76)
        A(valu('v_lshrrev_b32', T0, 1, vL), valu('v_mul_u32_u24', T0, 192, T0), valu('v_and_b32', T1, 1, vL),
          valu('v_lshl_add_u32', VD, T1, 4, T0),
          salu('s_mul_i32', sSO, sH, 73728), salu('s_mul_i32', sT[0], sW, 96 * 192), salu('s_add_u32', sSO, sSO, sT[0]),
          salu('s_lshl_b32', sT[0], sJ, 5), salu('s_add_u32', sSO, sSO, sT[0]), salu('s_mul_i32', sT[1], sW, 3072))
        for i in range(3):
            A(salu('s_add_u32', 'm0', sT[1], i * 1024), bload_lds(VD, SRD_X, sSO, 0, '', tag='pv'), salu('s_add_u32', sSO, sSO, 32 * 192))
        self.flo_dma(); self.addr_setup1()
        for t in range(o.npre_late): A(self.x_loads(t, t))
        VA = v(77)
        A(valu('v_lshrrev_b32', T0, 4, vL), valu('v_lshlrev_b32', T0, 3, T0), valu('v_bfe_u32', T1, vL, 2, 2), valu('v_add_u32', T0, T0, T1),
          valu('v_lshlrev_b32', T0, 5, T0), valu('v_and_b32', T1, 3, vL), valu('v_lshl_add_u32', T0, T1, 3, T0),
          salu('s_mul_i32', sT[1], sW, 3072), valu('v_add_u32', VA, sT[1], T0))
        ON = v(160, 4); FR = [v(164 + 4 * i, 4) for i in range(3)]; D = v(176, 4); CS = v(180, 4)
        for i in range(4): A(valu('v_mov_b32', ON[i], 0x3f803f80))
        A.wait_vm('pv')
        for u in range(3):
            for r in range(2): A(ds_read('ds_read_b64_tr_b16', FR[u][2 * r:2 * r + 2], VA, u * 1024 + r * 128))
        for u in range(3): A(mfma16(D, ON, FR[u], D if u else 0))
        A(valu('v_and_b32', T0, 15, vL), valu('v_lshlrev_b32', T0, 4, T0), salu('s_lshl_b32', sT[0], sW, 2),
          valu('v_add_u32', T1, sT[0], T0), ds_write('ds_write_b32', T1, D[0], 16384))
        A.barrier()
        A(ds_read('ds_read_b128', CS, T0, 16384))
        A(valu('v_add_f32', CS[0], CS[0], CS[1]), valu('v_add_f32', CS[2], CS[2], CS[3]), valu('v_add_f32', CS[0], CS[0], CS[2]),
          valu('v_mul_f32', CS[0], 1.0 / 384, CS[0]))
        for u in range(3):
            for i in range(4):
                x = FR[u][i]
                A(valu('v_lshlrev_b32', T0, 16, x), valu('v_and_b32', T1, 0xffff0000, x), valu('v_sub_f32', T0, T0, CS[0]),
                  valu('v_sub_f32', T1, T1, CS[0]), valu('v_cvt_pk_bf16_f32', x, T0, T1))
        A(salu('s_mul_i32', sT[0], sH, 12), salu('s_mul_i32', sT[1], sW, 3), salu('s_add_u32', sT[0], sT[0], sT[1]),
          salu('s_mul_i32', sT[0], sT[0], 6), salu('s_add_u32', sT[0], sT[0], sJ), salu('s_lshl_b32', sT[0], sT[0], 10),
          salu('s_add_u32', sT[0], sT[0], WS_V))
        for u in range(3):
            A(bstore('buffer_store_dwordx4', FR[u], LIN, SRD_WS, sT[0], 0, 'sc1', tag='st'), salu('s_add_u32', sT[0], sT[0], 6144))
        self.publish(DB_V)
        A.flush_hazards(8)

    def main(self, npre, cls):
        A = self.A; o = self.o
        self.cls = cls
        dbg = o.dump if o.dump else ''
        A(salu('s_and_b32', sT[0], sW, 1), salu('s_mul_i32', sWB, sT[0], 24576), salu('s_lshr_b32', sT[0], sW, 1),
          salu('s_lshl_b32', sT[0], sT[0], 16), salu('s_add_u32', sWB, sWB, sT[0]))
        self.wd_setup(768, WD, True)
        for ks in range(4): A(self.w_dma(ks))
        self.stamp()
        self.wtr_setup(WA, WB)
        A(valu('v_add_u32', WA, sWB, WA), valu('v_add_u32', WB, sWB, WB))
        self.fa_setup(FA, R0)
        A(valu('v_mov_b32', T0, 0x3f803f80), valu('v_lshlrev_b32', T1, 2, vTID), valu('v_min_u32', T1, 764, T1),
          ds_write('ds_write_b32', T1, T0, ONES), valu('v_mov_b32', T0, 0), valu('v_lshlrev_b32', T1, 2, vL),
          ds_write('ds_write_b32', T1, T0, FL))
        self.addr_setup2()
        post = [t for t in range(npre, 4)]
        def reads(ks):
            b = ks & 1
            L = [ds_read('ds_read_b128', FF[b][0], FA[ks & 3], (ks >> 2) * 256)]
            wr = []
            for j in range(6):
                wr.append([ds_read('ds_read_b64_tr_b16', WF[b][j][2 * r:2 * r + 2], WA if j % 2 == 0 else WB,
                                   (ks % 4) * 6144 + 32 * j + r * 768) for r in range(2)])
            L += wr[0]
            for m in range(1, 4): L.append(ds_read('ds_read_b128', FF[b][m], FA[ks & 3], m * 12288 + (ks >> 2) * 256))
            for j in range(1, 6): L += wr[j]
            return L
        A.wait_vm('w0'); A.barrier()
        self.stamp()
        A(reads(0))
        for ks in range(12):
            b = ks & 1
            M = [mfma16(LACC[m][j], WF[b][j], FF[b][m], LACC[m][j] if ks else 0) for j in range(6) for m in range(4)]
            fill = {}
            if ks < 11:
                fill[0] = [WaitVM(f'w{ks+1}')]
                spread(fill, reads(ks + 1), 0, 1)
            extra = []
            if 1 <= ks <= 8: extra = self.w_dma(ks + 3)
            if ks == o.kflag:
                extra = extra + [valu('v_lshlrev_b32', T0, 2, vL), bload('buffer_load_dword', FDB, T0, SRD_DB, 0, 0, 'sc1', tag='fl')]
            if ks == 9:
                extra = [self.check_flagA] + [salu('s_mul_i32', sSO, sW, 12288)]
                for i in range(12):
                    extra.append(bload('buffer_load_dwordx4', AFR[i], LIN, SRD_WS, sSO, (i % 4) * 1024, 'sc1', tag='A'))
                    if i % 4 == 3: extra.append(salu('s_add_u32', sSO, sSO, 4096))
            if ks == 10: extra = self.x_loads(post[0], post[0])
            if extra: spread(fill, extra, 4, 1)
            A(interleave(M, fill))
        self.stamp()
        A.barrier()
        LW = v(56); PK = [v(60 + 4 * i, 4) for i in range(4)]
        A(valu('v_and_b32', T0, 15, vL),
          valu('v_lshrrev_b32', T1, 2, T0), valu('v_lshrrev_b32', T2, 3, T0), valu('v_xor_b32', T2, T1, T2),
          valu('v_and_b32', T2, 1, T2), valu('v_lshlrev_b32', T2, 3, T2), valu('v_and_b32', T1, 1, T1), valu('v_or_b32', T2, T2, T1),
          valu('v_and_b32', T1, 1, T0), valu('v_lshl_or_b32', T2, T1, 2, T2), valu('v_and_b32', T1, 2, T0), valu('v_or_b32', T2, T2, T1),
          valu('v_mul_u32_u24', T0, 768, T0), valu('v_add_u32', LW, R0, T0),
          valu('v_bfe_u32', T0, vL, 4, 1), valu('v_lshlrev_b32', T0, 1, T0), valu('v_lshrrev_b32', T1, 5, vL), valu('v_add_u32', T0, T0, T1),
          salu('s_mul_i32', sT[0], sW, 12), valu('v_add_u32', T0, sT[0], T0))
        LWJ = [v(57), v(58), v(59)]
        for jp in range(3):
            A(valu('v_add_u32', T1, 4 * jp, T0), valu('v_xor_b32', T1, T1, T2), valu('v_lshl_add_u32', LWJ[jp], T1, 4, LW))
        n = 0
        for m in range(4):
            for jp in range(3):
                P = PK[n % 4]; n += 1
                x, y = LACC[m][2 * jp], LACC[m][2 * jp + 1]
                A(valu('v_cvt_pk_bf16_f32', P[0], x[0], x[1]), valu('v_cvt_pk_bf16_f32', P[1], x[2], x[3]),
                  valu('v_cvt_pk_bf16_f32', P[2], y[0], y[1]), valu('v_cvt_pk_bf16_f32', P[3], y[2], y[3]),
                  permswap('v_permlane16_swap_b32', P[0], P[2]), permswap('v_permlane16_swap_b32', P[1], P[3]),
                  ds_write('ds_write_b128', LWJ[jp], P, m * 12288))
        A.barrier()
        self.stamp()
        if dbg == 'lat':
            self.dump_lds(R0, 49152); return
        SA4 = CX
        A(salu('s_mul_i32', sT[0], sW, 12288))
        FO = [v(78 + i) for i in range(4)]; ONQ = v(82, 4)
        for j in range(4): A(valu('v_add_u32', FO[j], sT[0], FA[j]))
        for i in range(4): A(valu('v_mov_b32', ONQ[i], 0x3f803f80))
        rd = []; M = []
        nq = 0
        for ks in range(12):
            q = RING[nq % 8]; nq += 1
            rd.append((len(M), ds_read('ds_read_b128', q, FO[ks & 3], (ks >> 2) * 256)))
            M.append(mfma16(GA, q, q, GA if ks else 0)); M.append(mfma16(LSM, q, ONQ, LSM if ks else 0))
        for ks in range(12): M.append(mfma16(SA4, ONQ, AFR[ks], SA4 if ks else 0))
        for m in range(4):
            for ks in range(12):
                q = RING[nq % 8]; nq += 1
                rd.append((len(M), ds_read('ds_read_b128', q, FA[ks & 3], m * 12288 + (ks >> 2) * 256)))
                M.append(mfma16(SLO[m], q, AFR[ks], SLO[m] if ks else 0))
        fill = {}
        self.place_reads(fill, rd, M, 6)
        ex = [valu('v_lshrrev_b32', T0, 4, vL), valu('v_mul_u32_u24', T0, 80, T0)]
        for t in range(4):
            ex += [valu('v_add_u32', T1, 4 * t, T0), ds_bperm(LSQ[t], T1, GA[t])]
        spread(fill, ex, 30, 1)
        fill.setdefault(46, []).append(valu('v_mov_b32', SUMA, SA4[0]))
        if len(post) > 1: spread(fill, self.x_loads(post[1], post[1]), 40, 1, 2)
        A(interleave(M, fill))
        if dbg == 'slo':
            self.dump_regs([r for q in SLO for r in (q[0], q[1], q[2], q[3])] + [LSQ[i] for i in range(4)] + [LSM[i] for i in range(4)] + [SUMA]); return
        self.stamp()
        A(valu('v_mov_b32', LSUM, 0), valu('v_mov_b32', MREF, 0))
        for i in range(12): A(ds_write('ds_write_b128', XW, STG[0][i], i * 1024))
        A(valu('v_xor_b32', XW, 0x10000, XW))
        A.barrier()
        self.stamp()
        self.wvq = SPARE + STG[0] + STG[1] + STG[2] + STG[3] + AFR + RING
        sched = {0: [], 1: [], 2: [], 3: []}
        rem = post[2:]
        wv_next = 0
        avail = {0: 16, 1: 28, 2: 40, 3: 52}
        for t in range(4):
            if rem:
                tt = rem.pop(0); sched[t] = self.x_loads(tt, tt)
            elif t >= o.wv_start:
                hi = min(avail[t], wv_next + o.wv_per)
                sched[t] = self.wv_loads(wv_next, hi); wv_next = hi
        self.wv_next = wv_next; self.first_wv = min([t for t in range(4) if sched[t] and 'sc1' in sched[t][-1].text], default=4)
        for t in range(4):
            self.step(t, sched[t])
            if dbg == f'step{t}': return
        self.epilogue()

    def wv_loads(self, i0, i1):
        L = []
        for i in range(i0, i1):
            if i == i0 or i % 4 == 0: L.append(salu('s_add_u32', sSO2, sP0, (i // 4) * 4096))
            L.append(bload('buffer_load_dwordx4', self.wvq[i], LIN, SRD_WS, sSO2, (i % 4) * 1024, 'sc1', tag='wv'))
        return L

    def place_reads(self, fill, rd, M, ahead):
        for k, (m, ins) in enumerate(rd):
            if k < ahead: slot = -1
            else: slot = rd[k - ahead][0]
            fill.setdefault(slot, []).append(ins)

    def check_flagA(self, A):
        lr = self.lab('fa'); ls = self.lab('fs')
        A.label(lr)
        A(valu('v_cmp_eq_u32', 'vcc', 12, FDB), salu('s_lshr_b64', sM, 'vcc', 32), readlane(sEP, FDB, DB_EP),
          readlane(sT[0], FDB, DB_V),
          salu('s_and_b32', sM[0], sM[0], 15), salu('s_cmp_eq_u32', sM[0], 15), salu('s_cselect_b32', sM[0], sEP, 0),
          salu('s_cmp_eq_u32', sT[0], 24), salu('s_cselect_b32', sM[0], sM[0], 0),
          salu('s_cmp_eq_u32', sM[0], 0))
        A.line(f'    s_cbranch_scc1 {ls}')
        lb = self.lab('fb'); A.label(lb)
        B = Asm(); B.label(ls)
        B.line('    s_sleep 2')
        B(valu('v_lshlrev_b32', T0, 2, vL), bload('buffer_load_dword', FDB, T0, SRD_DB, 0, 0, 'sc1'))
        B.wait_vm()
        self.spin_guard(B, lr)
        B.line(f'    s_branch {lb}')
        self.tail.append(B.text())
        A(salu('s_mul_i32', sTAG, sEP, 0x9E3779B1))
        A.line('    s_getreg_b32 s46, hwreg(HW_REG_XCC_ID)'); A.clock += 1
        A(salu('s_and_b32', sXCC, sXCC, 15))
        if self.o.fakegrp:
            self.fake_group(A)
        A(salu('s_and_b32', sT[0], sTAG, 0xfffffff0), salu('s_or_b32', sT[0], sT[0], sXCC),
          valu('v_mov_b32', T0, sT[0]), salu('s_lshl_b32', sT[1], sB, 2), salu('s_add_u32', sT[1], sT[1], WS_TAB), valu('v_mov_b32', T1, 0),
          salu('s_mov_b64', 'exec', 1))
        A(bstore('buffer_store_dword', T0, T1, SRD_WS, sT[1], 0, 'sc1', tag='tab'))
        A(salu('s_mov_b64', 'exec', -1))

    def fake_group(self, A):
        A(salu('s_lshr_b32', sT[0], sB, 3), salu('s_cmp_lt_u32', sT[0], self.o.fakegrp), salu('s_cselect_b32', sT[0], 8, 0),
          salu('s_and_b32', sXCC, sXCC, 7), salu('s_add_u32', sXCC, sXCC, sT[0]))

    def addr_setup2(self):
        A = self.A
        G = v(56); Q = v(57); F = v(58)
        A(valu('v_lshrrev_b32', G, 4, vL), valu('v_and_b32', Q, 15, vL))
        A(valu('v_and_b32', T0, 3, Q), valu('v_lshlrev_b32', T0, 2, T0), valu('v_lshrrev_b32', T1, 1, Q), valu('v_and_b32', T1, 2, T1),
          valu('v_or_b32', T0, T0, T1), valu('v_xor_b32', T0, T0, G), valu('v_lshlrev_b32', T0, 4, T0), valu('v_mul_u32_u24', T1, 768, Q),
          salu('s_mul_i32', sT[0], sW, 12288))
        for j in range(4):
            A(valu('v_xor_b32', T2, 64 * j, T0), valu('v_add_u32', XA[j], T1, T2), valu('v_add_u32', XO[j], sT[0], XA[j]))
        A(valu('v_add_u32', XW, sT[0], LIN))
        HH = v(59); JJ = v(60); II = v(61); HB = v(62)
        A(valu('v_lshrrev_b32', HH, 5, vL), valu('v_and_b32', T0, 1, G), valu('v_lshlrev_b32', T0, 1, T0), valu('v_and_b32', T1, 1, vL),
          valu('v_or_b32', JJ, T0, T1), valu('v_lshrrev_b32', II, 2, Q), valu('v_and_b32', T0, 2, vL), valu('v_lshlrev_b32', HB, 2, T0))
        for ct in range(3):
            A(salu('s_mul_i32', sT[0], sW, 3), salu('s_add_u32', sT[0], sT[0], ct), salu('s_lshr_b32', sT[1], sT[0], 2),
              salu('s_lshl_b32', sT[1], sT[1], 8), salu('s_and_b32', sT[0], sT[0], 3), salu('s_lshl_b32', sT[0], sT[0], 2))
            for r in range(2):
                A(valu('v_lshlrev_b32', T0, 2, II), valu('v_xor_b32', T0, T0, JJ), valu('v_xor_b32', T0, sT[0], T0))
                if r: A(valu('v_xor_b32', T0, 2, T0))
                A(valu('v_lshl_add_u32', T0, T0, 4, HB), valu('v_add_u32', T0, sT[1], T0),
                  valu('v_lshl_add_u32', T1, HH, 3, II), valu('v_add_u32', T1, 4 * r, T1), valu('v_mul_u32_u24', T1, 768, T1),
                  valu('v_add_u32', XT[2 * ct + r], T0, T1))
                A(valu('v_lshrrev_b32', T0, 1, II), valu('v_and_b32', T1, 1, II),
                  valu('v_lshl_add_u32', T2, T0, 2, T1), valu('v_add_u32', T2, 8 * r, T2), valu('v_lshl_add_u32', T2, HH, 4, T2),
                  valu('v_mul_u32_u24', T2, 768, T2),
                  valu('v_lshl_or_b32', T1, T1, 2, T0))
                A(valu('v_xor_b32', T0, r, T0), valu('v_lshl_or_b32', T1, T0, 3, T1),
                  valu('v_xor_b32', T1, T1, JJ), valu('v_xor_b32', T1, sT[0], T1), valu('v_lshl_add_u32', T1, T1, 4, HB),
                  valu('v_add3_u32', T1, T1, T2, sT[1]), valu('v_add_u32', LT[2 * ct + r], R0, T1))
        A(salu('s_lshl_b32', sT[0], sW, 11), salu('s_add_u32', sT[0], sT[0], PH),
          valu('v_lshrrev_b32', T0, 1, Q), valu('v_lshrrev_b32', T1, 1, G), valu('v_xor_b32', T0, T0, T1), valu('v_lshlrev_b32', T0, 4, T0),
          valu('v_and_b32', T1, 1, G), valu('v_lshl_add_u32', T0, T1, 3, T0), valu('v_lshlrev_b32', T1, 7, Q), valu('v_add_u32', T1, sT[0], T1))
        for g in range(4): A(valu('v_xor_b32', T2, 32 * g, T0), valu('v_add_u32', PHW[g], T1, T2))
        A(valu('v_bfe_u32', T0, vL, 1, 3), valu('v_xor_b32', T0, T0, HH), valu('v_lshlrev_b32', T0, 4, T0),
          valu('v_and_b32', T1, 31, vL), valu('v_lshlrev_b32', T1, 7, T1), valu('v_add_u32', T1, PH, T1))
        for g in range(4): A(valu('v_xor_b32', T2, 32 * g, T0), valu('v_add_u32', PHR[g], T1, T2))
        A(salu('s_lshl_b32', sT[0], sW, 10), salu('s_add_u32', sT[0], sT[0], PL), valu('v_lshlrev_b32', T0, 6, Q), valu('v_add_u32', T0, sT[0], T0),
          valu('v_lshl_add_u32', T0, II, 4, T0), valu('v_lshl_add_u32', PLW, G, 2, T0))
        A(valu('v_bfe_u32', T0, vL, 2, 2), valu('v_xor_b32', T0, T0, HH), valu('v_lshlrev_b32', T0, 4, T0),
          valu('v_and_b32', T1, 31, vL), valu('v_lshlrev_b32', T1, 6, T1), valu('v_add_u32', T1, PL, T1),
          valu('v_add_u32', PLR[0], T1, T0), valu('v_xor_b32', T0, 32, T0), valu('v_add_u32', PLR[1], T1, T0))
        A(valu('v_lshlrev_b32', T0, 4, G), valu('v_add_u32', RRD, RR, T0),
          salu('s_lshl_b32', sT[0], sW, 6), salu('s_add_u32', sT[0], sT[0], RR), valu('v_lshlrev_b32', T0, 2, Q), valu('v_add_u32', T0, sT[0], T0),
          valu('v_lshlrev_b32', T1, 2, vL), valu('v_add_u32', T1, DUM, T1), valu('v_cmp_eq_u32', 'vcc', II, G),
          valu('v_cndmask_b32', RWR, T1, T0))
        A(valu('v_lshlrev_b32', T0, 2, II), salu('s_mov_b32', sT[1], 0x1890), valu('v_lshrrev_b32', T0, T0, sT[1]), valu('v_and_b32', T0, 15, T0),
          valu('v_xor_b32', T0, T0, G), valu('v_lshlrev_b32', T0, 4, T0),
          valu('v_mul_u32_u24', T1, 3072, II), salu('s_mul_i32', sT[0], sW, 12288), salu('s_add_u32', sT[0], sT[0], R0),
          valu('v_add_u32', T1, sT[0], T1), valu('v_and_b32', T2, 3, Q), valu('v_cmp_eq_u32', 'vcc', 0, T2),
          valu('v_mov_b32', F, 768), valu('v_cndmask_b32', CD, 0, F))
        for j in range(4):
            A(valu('v_xor_b32', T2, 64 * j, T0), valu('v_add_u32', T2, T1, T2), valu('v_mov_b32', F, ONES + 64 * (j ^ 1) + 32),
              valu('v_cndmask_b32', CA[j], F, T2))
        A(salu('s_mov_b32', sK[4], 0x22222222), salu('s_mov_b32', sK[5], 0x22222222), salu('s_mov_b32', sK[6], 0xcccccccc),
          salu('s_mov_b32', sK[7], 0xcccccccc), salu('s_mov_b32', sK[8], 0x88888888), salu('s_mov_b32', sK[9], 0x88888888),
          salu('s_mov_b32', sK[1], 1.0 / 384), salu('s_mov_b32', sK[2], 1e-5), salu('s_mov_b32', sK[3], THR),
          salu('s_mul_i32', sP0, sW, 73728), salu('s_add_u32', sP0, sP0, WS_V))

    def softmax_group(self, t, g, rb, first=False, raw=False):
        r, m = rb
        S = SACC[g]; slo = SLO[g][t]
        L = []
        for i in range(4): L.append(valu('v_fma_f32', m[i], -m[i], SUMA, slo))
        for i in range(4): L.append(valu('v_add_f32', m[i], m[i], S[i]))
        if raw or first:
            for i in range(4): L.append(valu('v_mul_f32', m[i], m[i], r[i]))
            if raw: return L
            L += [valu('v_max3_f32', MREF, m[0], m[1], m[2]), valu('v_max_f32', MREF, MREF, m[3]),
                  lambda A: self.allreduce_g(A, 'v_max_f32', MREF, T2)]
            for i in range(4): L.append(valu('v_sub_f32', m[i], m[i], MREF))
        else:
            for i in range(4): L.append(valu('v_fma_f32', m[i], m[i], r[i], -MREF))
        L += self.softmax_fin(t, g, rb, track=True)
        return L

    def softmax_fin(self, t, g, rb, track):
        r, m = rb
        L = []
        if track:
            if g == 0: L += [valu('v_max3_f32', EMAX, m[0], m[1], m[2]), valu('v_max_f32', EMAX, EMAX, m[3])]
            else: L += [valu('v_max3_f32', EMAX, m[0], m[1], EMAX), valu('v_max3_f32', EMAX, m[2], m[3], EMAX)]
        for i in range(4): L.append(valu('v_exp_f32', m[i], m[i]))
        for i in range(4): L.append(valu('v_mul_f32', r[i], r[i], m[i]))
        L += [valu('v_add_f32', m[0], m[0], m[1]), valu('v_add_f32', m[2], m[2], m[3])]
        if g == 0: L.append(valu('v_add_f32', LST, m[0], m[2]))
        else: L += [valu('v_add_f32', m[0], m[0], m[2]), valu('v_add_f32', LST, LST, m[0])]
        L += [valu('v_cvt_pk_bf16_f32', m[2], r[0], r[1]), valu('v_cvt_pk_bf16_f32', m[3], r[2], r[3]),
              valu('v_add_f32', r[0], r[0], r[1]), valu('v_add_f32', r[2], r[2], r[3]), valu('v_add_f32', POOL[g][t & 1], r[0], r[2]),
              ds_write('ds_write_b64', PHW[g], m[2:4], 0)]
        return L

    def pool_write(self):
        L = []
        for g in range(4):
            L += [valu('v_cvt_pk_bf16_f32', T0, POOL[g][0], POOL[g][1]), valu('v_xor_b32', T1, 16 * g, PLW) if g else valu('v_mov_b32', T1, PLW),
                  ds_write('ds_write_b32', T1, T0, 0)]
        return L

    def r_reads(self, g, rb):
        return [ds_read('ds_read_b128', rb[0], RRD, 64 * g), ds_read('ds_read_b128', rb[1], RRD, 64 * g + 256)]

    def rare_softmax(self, t, lab, back):
        B = Asm(); B.label(lab)
        B.line('    s_waitcnt lgkmcnt(0)'); B.nop(16)
        for g in range(4):
            B(self.r_reads(g, RB[0])); B(self.softmax_group(t, g, RB[0], raw=True))
            m = RB[0][1]
            if g == 0: B(valu('v_max3_f32', EMAX, m[0], m[1], m[2]), valu('v_max_f32', EMAX, EMAX, m[3]))
            else: B(valu('v_max3_f32', EMAX, m[0], m[1], EMAX), valu('v_max3_f32', EMAX, m[2], m[3], EMAX))
        self.allreduce_g(B, 'v_max_f32', EMAX, T2)
        B(valu('v_max_f32', EMAX, EMAX, MREF), valu('v_sub_f32', T0, MREF, EMAX), valu('v_exp_f32', T0, T0), valu('v_mov_b32', MREF, EMAX),
          valu('v_mul_f32', LSUM, LSUM, T0))
        if t & 1:
            for g in range(4): B(valu('v_mul_f32', POOL[g][0], POOL[g][0], T0))
        B(valu('v_and_b32', T1, 15, vL), valu('v_lshlrev_b32', T1, 2, T1), salu('s_lshl_b32', sT[0], sW, 6), valu('v_add_u32', T1, sT[0], T1),
          ds_write('ds_write_b32', T1, T0, AL), valu('v_mov_b32', T0, t + 1), salu('s_lshl_b32', sT[0], sW, 2), valu('v_mov_b32', T1, sT[0]),
          ds_write('ds_write_b32', T1, T0, FL))
        for g in range(4):
            B(self.r_reads(g, RB[0])); B(self.softmax_group(t, g, RB[0], raw=True))
            m = RB[0][1]
            for i in range(4): B(valu('v_sub_f32', m[i], m[i], MREF))
            B(self.softmax_fin(t, g, RB[0], track=False))
        B.wait_lg(); B.nop(4)
        B.line(f'    s_branch {back}')
        self.tail.append(B.text())

    def rare_rescale(self, t, lab, back):
        B = Asm(); B.label(lab)
        B.line('    s_waitcnt lgkmcnt(0)'); B.nop(16)
        B(valu('v_and_b32', T0, 31, vL), valu('v_lshlrev_b32', T0, 2, T0), valu('v_bfe_u32', T1, vL, 4, 1), valu('v_lshlrev_b32', T1, 2, T1))
        for nu in range(2):
            B(ds_read('ds_read_b32', T2, T0, AL + 128 * nu), ds_read('ds_read_b32', EMAX, T1, FL + 8 * nu),
              valu('v_cmp_eq_u32', 'vcc', t + 1, EMAX), valu('v_cndmask_b32', T2, 1.0, T2))
            for ct in range(3):
                for i in range(16): B(valu('v_mul_f32', UACC[ct][nu][i], UACC[ct][nu][i], T2))
        B.nop(4)
        B.line(f'    s_branch {back}')
        self.tail.append(B.text())

    def step(self, t, loads):
        A = self.A; o = self.o
        dbg = o.dump or ''
        rd = []; M = []; nq = 0
        for ks in range(12):
            x = RING[nq % 8]; nq += 1; c = RING[nq % 8]; nq += 1
            rd.append((len(M), ds_read('ds_read_b128', x, XO[ks & 3], (ks >> 2) * 256)))
            M.append(mfma16(GA, x, x, GA if ks else 0))
            rd.append((len(M), ds_read('ds_read_b128', c, CA[ks & 3], (ks >> 2) * 256)))
            M.append(mfma16(CX, c, x, CX if ks else 0))
        for g in range(4):
            for ks in range(12):
                x = RING[nq % 8]; nq += 1
                rd.append((len(M), ds_read('ds_read_b128', x, XA[ks & 3], g * 12288 + (ks >> 2) * 256)))
                M.append(mfma16(SACC[g], x, AFR[ks], SACC[g] if ks else 0))
        fill = {}
        self.place_reads(fill, rd, M, 5)
        ex = [valu('v_cndmask_b32', T0, GA[0], GA[1], s(92, 2)), valu('v_cndmask_b32', T1, GA[2], GA[3], s(96, 2)),
              valu('v_add_f32', T2, CX[1], LSM[t]),
              valu('v_cndmask_b32', T0, T0, T1, s(94, 2)), valu('v_mul_f32', T2, sK[1], T2),
              valu('v_fma_f32', T0, CX[0], 2.0, T0), valu('v_add_f32', T0, T0, LSQ[t]),
              valu('v_mul_f32', T1, T2, T2), valu('v_fma_f32', T0, T0, sK[1], -T1), valu('v_max_f32', T0, 0, T0),
              valu('v_add_f32', T0, sK[2], T0), valu('v_rsq_f32', T0, T0),
              ds_write('ds_write_b32', RWR, T2, 256, tag='rw'), ds_write('ds_write_b32', RWR, T0, 0, tag='rw')]
        sl = spread(fill, ex, 26, 1)
        def bar2(A):
            A.wait_lg('rw'); A.barrier(drain_lds=False)
        fill.setdefault(sl + 1, []).append(bar2)
        sl += 2
        sm = []
        sm += self.r_reads(0, RB[0]) + self.r_reads(1, RB[1])
        sm += self.softmax_group(t, 0, RB[0], first=(t == 0)) + self.r_reads(2, RB[0])
        sm += self.softmax_group(t, 1, RB[1]) + self.r_reads(3, RB[1])
        nhid = 71 - sl
        spread(fill, sm[:nhid], sl, 1)
        A(interleave(M, fill))
        A(sm[nhid:])
        A(self.softmax_group(t, 2, RB[0])); A(self.softmax_group(t, 3, RB[1]))
        lr = self.lab('rare'); lb = self.lab('back')
        A(valu('v_cmp_lt_f32', 'vcc', sK[3], EMAX)); A.nop(2)
        A.line(f'    s_cbranch_vccnz {lr}')
        A.label(lb)
        self.rare_softmax(t, lr, lb)
        A(valu('v_add_f32', LSUM, LSUM, LST))
        if t & 1: A(self.pool_write())
        XTB = [[RING[3 * b + ct] for ct in range(3)] for b in range(2)]
        PB = [[RING[6], RING[7]], [GA, CX]]
        ksteps = [('h', g) for g in range(4)] + ([('l', u) for u in range(2)] if t & 1 else [])
        def xreads(k, b):
            kind, g = ksteps[k]
            ad, off = (XT, g * 12288) if kind == 'h' else (LT, g * 24576)
            return [ds_read('ds_read_b64_tr_b16', XTB[b][ct][2 * r:2 * r + 2], ad[2 * ct + r], off) for ct in range(3) for r in range(2)]
        def preads(k, b):
            kind, g = ksteps[k]
            if kind == 'h': return [ds_read('ds_read_b128', PB[b][nu], PHR[g], nu * 4096) for nu in range(2)]
            return [ds_read('ds_read_b128', PB[b][nu], PLR[g], nu * 2048) for nu in range(2)]
        A(xreads(0, 0))
        A.barrier()
        if dbg == f'step{t}':
            self.dump_lds(MISC, 16384); return
        A(preads(0, 0))
        if t > 0:
            FQ = RB[0][0]
            lr = self.lab('resc'); lb = self.lab('rback')
            A(valu('v_mov_b32', T0, 0), ds_read('ds_read_b128', FQ, T0, FL))
            A(valu('v_max3_u32', T1, FQ[0], FQ[1], FQ[2]), valu('v_max_u32', T1, T1, FQ[3]), readfirstlane(sT[0], T1),
              salu('s_cmp_eq_u32', sT[0], t + 1))
            A.line(f'    s_cbranch_scc1 {lr}')
            A.label(lb)
            self.rare_rescale(t, lr, lb)
        M = []; fill = {}
        for k in range(len(ksteps)):
            b = k & 1
            base = len(M)
            for ct in range(3):
                for nu in range(2):
                    M.append(mfma32(UACC[ct][nu], XTB[b][ct], PB[b][nu], UACC[ct][nu] if (t or k) else 0))
            if k + 1 < len(ksteps):
                rr = preads(k + 1, b ^ 1) + xreads(k + 1, b ^ 1)
                spread(fill, rr, base, 2)
        n = len(M)
        upd = []
        if t < 3:
            for r in XA + XO: upd.append(valu('v_xor_b32', r, 0x10000, r))
            ck = [64, 96, 64][t]
            for r in CA: upd += [valu('v_xor_b32', r, ck, r), valu('v_add_u32', r, r, CD)]
        spread(fill, upd, 1, 2)
        spread(fill, loads, 2, 1)
        if t == o.tab_step: fill.setdefault(3, []).append(self.table_load)
        if t < 3:
            wr = [ds_write('ds_write_b128', XW, STG[t + 1][i], i * 1024) for i in range(12)] + [valu('v_xor_b32', XW, 0x10000, XW)]
            spread(fill, wr, n - 6, 2)
        A(interleave(M, fill))
        if t < 3:
            for r in XT: A(valu('v_xor_b32', r, 0x10000, r))
        if t == 1:
            for r in LT: A(valu('v_xor_b32', r, 32, r), valu('v_add_u32', r, 1536, r))
        if t == o.tab_step: self.table_use()
        A.barrier()
        if t == o.tab_step: self.table_use2()
        self.stamp()

    def table_load(self, A):
        TB = RB[1][1]
        A(valu('v_lshlrev_b32', TB[2], 2, vTID), salu('s_mov_b32', sSO, WS_TAB),
          bload('buffer_load_dword', TB[0], TB[2], SRD_WS, sSO, 0, 'sc1', tag='tb'))

    def table_use(self):
        A = self.A
        TB = RB[1][1]
        lr = self.lab('tb'); ls = self.lab('tbs'); lb = self.lab('tbb')
        A.label(lr)
        A(valu('v_xor_b32', T0, sTAG, TB[0]), valu('v_cmp_lt_u32', 'vcc', 15, T0), salu('s_cmp_lg_u64', 'vcc', 0))
        A.line(f'    s_cbranch_scc1 {ls}')
        A.label(lb)
        B = Asm(); B.label(ls); B.line('    s_sleep 2')
        B(salu('s_mov_b32', sSO, WS_TAB), bload('buffer_load_dword', TB[0], TB[2], SRD_WS, sSO, 0, 'sc1'))
        B.wait_vm(); self.spin_guard(B, lr); B.line(f'    s_branch {lb}')
        self.tail.append(B.text())
        A(valu('v_and_b32', TB[0], 15, TB[0]), valu('v_cmp_eq_u32', sM2, sXCC, TB[0]),
          valu('v_mov_b32', T1, 1), valu('v_lshlrev_b32', T1, TB[0], T1))
        for sh in ('row_ror:1', 'row_ror:2', 'row_ror:4', 'row_ror:8'):
            A(valu('v_or_b32_dpp', T1, T1, T1, mods=sh))
        self.allreduce_g(A, 'v_or_b32', T1, T2)
        A(salu('s_bcnt1_i32_b64', sT[0], sM2), valu('v_mov_b32', T0, sT[0]), salu('s_lshl_b32', sT[1], sW, 3), valu('v_mov_b32', T2, sT[1]))
        A(valu('v_mov_b32', TB[2], T0), valu('v_mov_b32', TB[3], T1), ds_write('ds_write_b64', T2, TB[2:4], CNT))

    def table_use2(self):
        A = self.A
        TB = RB[1][1]; Q0 = RB[0][0]; Q1 = RB[0][1]
        A(valu('v_mov_b32', T0, 0), ds_read('ds_read_b128', Q0, T0, CNT), ds_read('ds_read_b128', Q1, T0, CNT + 16))
        A(readfirstlane(sT[0], Q0[0]), readfirstlane(sT[1], Q0[2]), readfirstlane(sT[2], Q1[0]), readfirstlane(sT[3], Q1[2]),
          valu('v_or3_b32', T1, Q0[1], Q0[3], Q1[1]), valu('v_or_b32', T1, T1, Q1[3]), readfirstlane(sGM, T1))
        A(salu('s_add_u32', sT[1], sT[1], sT[0]), salu('s_add_u32', sT[2], sT[2], sT[1]), salu('s_add_u32', sN, sT[3], sT[2]),
          salu('s_cmp_eq_u32', sW, 1), salu('s_cselect_b32', sP1, sT[0], 0), salu('s_cmp_eq_u32', sW, 2), salu('s_cselect_b32', sP1, sT[1], sP1),
          salu('s_cmp_eq_u32', sW, 3), salu('s_cselect_b32', sP1, sT[2], sP1))
        A(Ins(f'v_mbcnt_lo_u32_b32 {T0}, {sM2[0]}, 0', 'valu', regset([sM2]), regset([T0])),
          Ins(f'v_mbcnt_hi_u32_b32 {T0}, {sM2[1]}, {T0}', 'valu', regset([sM2, T0]), regset([T0])),
          valu('v_add_u32', T0, sP1, T0), valu('v_lshlrev_b32', T1, 2, T0), valu('v_add_u32', T1, MEMB, T1),
          valu('v_lshlrev_b32', T2, 2, vL), valu('v_add_u32', T2, DUM, T2), valu('v_cndmask_b32', T1, T2, T1, sM2),
          ds_write('ds_write_b32', T1, vTID, 0))
        A(valu('v_cmp_eq_u32', 'vcc', sB, vTID), valu('v_mov_b32', T1, CNT + 32), valu('v_cndmask_b32', T1, T2, T1),
          ds_write('ds_write_b32', T1, T0, 0))

    def epilogue(self):
        A = self.A; o = self.o
        A(self.wv_loads(self.wv_next, 64))
        self.allreduce_g(A, 'v_add_f32', LSUM, T2)
        A(valu('v_and_b32', T0, 15, vL), valu('v_lshlrev_b32', T0, 2, T0), salu('s_lshl_b32', sT[0], sW, 6), valu('v_add_u32', T0, sT[0], T0),
          ds_write('ds_write_b32', T0, MREF, MLM), ds_write('ds_write_b32', T0, LSUM, MLL))
        A(self.wv_loads(max(64, self.wv_next), 72))
        UW = [v(50 + i) for i in range(6)]
        A(valu('v_and_b32', T0, 15, vL),
          valu('v_lshrrev_b32', T1, 2, T0), valu('v_lshrrev_b32', T2, 3, T0), valu('v_xor_b32', T2, T1, T2),
          valu('v_and_b32', T2, 1, T2), valu('v_lshlrev_b32', T2, 3, T2), valu('v_and_b32', T1, 1, T1), valu('v_or_b32', T2, T2, T1),
          valu('v_and_b32', T1, 1, T0), valu('v_lshl_or_b32', T2, T1, 2, T2), valu('v_and_b32', T1, 2, T0), valu('v_or_b32', T2, T2, T1),
          valu('v_and_b32', T0, 31, vL), valu('v_mul_u32_u24', EMAX, 768, T0),
          valu('v_lshrrev_b32', T0, 5, vL), salu('s_mul_i32', sT[0], sW, 12), valu('v_add_u32', T0, sT[0], T0))
        for i in range(6):
            A(valu('v_add_u32', T1, 2 * i, T0), valu('v_xor_b32', T1, T1, T2), valu('v_lshl_add_u32', UW[i], T1, 4, EMAX))
        PK = [v(56 + 4 * i, 4) for i in range(4)]
        n = 0
        for ct in range(3):
            for nu in range(2):
                for u in range(2):
                    P = PK[n % 4]; n += 1; x = UACC[ct][nu]
                    for e in range(4): A(valu('v_cvt_pk_bf16_f32', P[e], x[8 * u + 2 * e], x[8 * u + 2 * e + 1]))
                    A(ds_write('ds_write_b128', UW[2 * ct + u], P, nu * 24576))
        UA = [v(72 + i) for i in range(4)]
        self.fa_setup(UA, S0)
        A(salu('s_mul_i32', sT[0], sW, 12288))
        for j in range(4): A(valu('v_add_u32', UA[j], sT[0], UA[j]))
        A.barrier()
        self.stamp()
        UQ = [v(160 + 4 * i, 4) for i in range(12)]
        D = [v(208 + 4 * j, 4) for j in range(6)]
        M4 = v(232, 4); L4 = v(236, 4)
        for ks in range(12): A(ds_read('ds_read_b128', UQ[ks], UA[ks & 3], (ks >> 2) * 256))
        A(valu('v_lshrrev_b32', T0, 4, vL), valu('v_lshlrev_b32', T0, 4, T0), salu('s_lshl_b32', sT[0], sW, 6), valu('v_add_u32', T0, sT[0], T0),
          ds_read('ds_read_b128', M4, T0, MLM), ds_read('ds_read_b128', L4, T0, MLL))
        M = [mfma16(D[j], UQ[ks], self.wvq[6 * ks + j], D[j] if ks else 0) for ks in range(12) for j in range(6)]
        TG = v(240); X4 = v(244, 4); MO = v(241)
        ex = [valu('v_mov_b32', TG, sTAG), valu('v_lshlrev_b32', T1, 16, TG), valu('v_and_b32', TG, 0xffff0000, TG),
              salu('s_mov_b32', sM[0], 0xaaaaaaaa), salu('s_mov_b32', sM[1], 0xaaaaaaaa),
              salu('s_mov_b32', sM2[0], 0xcccccccc), salu('s_mov_b32', sM2[1], 0xcccccccc),
              valu('v_cndmask_b32', TG, T1, TG, sM)]
        for i in range(4):
            ex += [valu('v_cndmask_b32', X4[i], M4[i], L4[i], sM2), valu('v_lshrrev_b32', T1, 16, X4[i]), valu('v_and_b32', X4[i], 0xffff, X4[i]),
                   valu('v_cndmask_b32', X4[i], T1, X4[i], sM), valu('v_or_b32', X4[i], X4[i], TG)]
        ex += [valu('v_lshrrev_b32', T0, 4, vL), valu('v_lshlrev_b32', T0, 10, T0), valu('v_and_b32', T1, 15, vL), valu('v_lshl_add_u32', MO, T1, 4, T0),
               salu('s_lshl_b32', sSO, sB, 14), salu('s_lshl_b32', sT[0], sW, 12), salu('s_add_u32', sSO, sSO, sT[0]), salu('s_add_u32', sSO, sSO, WS_MA)]
        fill = {}
        spread(fill, ex, 8, 1)
        A(interleave(M, fill))
        OQ = [v(160 + 4 * i, 4) for i in range(4)]
        for i in range(4):
            for e in range(3): A(valu('v_cvt_pk_bf16_f32', OQ[i][e], D[2 * e][i], D[2 * e + 1][i]))
            A(valu('v_mov_b32', OQ[i][3], X4[i]))
            A(bstore('buffer_store_dwordx4', OQ[i], MO, SRD_WS, sSO, i * 256, '', tag='ma'))
        self.stamp()

    def unpack_ml(self, A, G, m, l):
        A(valu('v_and_b32', T0, 0xffff, G[3]),
          valu('v_mov_b32_dpp', m, T0, mods='quad_perm:[0,0,0,0]'), valu('v_mov_b32_dpp', T1, T0, mods='quad_perm:[1,1,1,1]'),
          valu('v_mov_b32_dpp', l, T0, mods='quad_perm:[2,2,2,2]'), valu('v_mov_b32_dpp', T2, T0, mods='quad_perm:[3,3,3,3]'),
          valu('v_lshl_or_b32', m, m, 16, T1), valu('v_lshl_or_b32', l, l, 16, T2))

    def merge(self, A, Gs, valid, ACC, MX, LX, MS, LS, first):
        NEG = -3.0e38
        for i, G in enumerate(Gs):
            self.unpack_ml(A, G, MS[i], LS[i])
            A(valu('v_mov_b32', T0, NEG), valu('v_cndmask_b32', MS[i], T0, MS[i], valid[i]))
        if first: A(valu('v_mov_b32', T0, MS[0]))
        else: A(valu('v_max_f32', T0, MX, MS[0]))
        for i in range(1, len(Gs)): A(valu('v_max_f32', T0, T0, MS[i]))
        if not first:
            A(valu('v_sub_f32', T1, MX, T0), valu('v_exp_f32', T1, T1), valu('v_mul_f32', LX, LX, T1))
            for e in range(6): A(valu('v_mul_f32', ACC[e], ACC[e], T1))
        A(valu('v_mov_b32', MX, T0))
        for i, G in enumerate(Gs):
            A(valu('v_sub_f32', MS[i], MS[i], MX), valu('v_exp_f32', MS[i], MS[i]))
        for i, G in enumerate(Gs):
            z = first and i == 0
            A(valu('v_cndmask_b32', MS[i], 0, MS[i], valid[i]))
            A(valu('v_mul_f32', LX, MS[i], LS[i]) if z else valu('v_fma_f32', LX, MS[i], LS[i], LX))
            for e in range(3):
                A(valu('v_lshlrev_b32', T0, 16, G[e]), valu('v_and_b32', T1, 0xffff0000, G[e]))
                A(valu('v_mul_f32', ACC[2 * e], MS[i], T0) if z else valu('v_fma_f32', ACC[2 * e], MS[i], T0, ACC[2 * e]))
                A(valu('v_mul_f32', ACC[2 * e + 1], MS[i], T1) if z else valu('v_fma_f32', ACC[2 * e + 1], MS[i], T1, ACC[2 * e + 1]))

    def xlane(self, A, ACC, MX, LX, with8):
        MG = v(200)
        A(valu('v_mov_b32', MG, MX))
        if with8: A(valu('v_max_f32_dpp', MG, MG, MG, mods='row_ror:8'))
        self.allreduce_g(A, 'v_max_f32', MG, T2)
        A(valu('v_sub_f32', T1, MX, MG), valu('v_exp_f32', T1, T1), valu('v_mov_b32', MX, MG))
        vals = [LX] + [ACC[e] for e in range(6)]
        for x in vals: A(valu('v_mul_f32', x, x, T1))
        if with8:
            for x in vals: A(valu('v_add_f32_dpp', x, x, x, mods='row_ror:8'))
        TT = [v(201 + i) for i in range(7)]
        for op in ('v_permlane16_swap_b32', 'v_permlane32_swap_b32'):
            for x, t in zip(vals, TT): A(valu('v_mov_b32', t, x))
            for x, t in zip(vals, TT): A(permswap(op, t, x))
            for x, t in zip(vals, TT): A(valu('v_add_f32', x, x, t))

    def tail_phase(self):
        A = self.A; o = self.o
        A.flush_hazards(4)
        TG = v(240)
        srd(A, SRD_X, PWO, 294912); srd(A, SRD_Y, PQ, 12288); srd(A, SRD_Z, POUT, 12288)
        WO = [v(56 + 4 * j, 4) for j in range(6)]; QV = v(80)
        A(valu('v_and_b32', T0, 15, vL), valu('v_mul_u32_u24', T0, 768, T0), valu('v_lshrrev_b32', T1, 4, vL), valu('v_mul_u32_u24', T1, 12, T1),
          valu('v_add_u32', v(81), T0, T1), salu('s_mul_i32', sSO, sW, 96 * 768), salu('s_and_b32', sT[0], sB, 15), salu('s_mul_i32', sT[0], sT[0], 48),
          salu('s_add_u32', sSO, sSO, sT[0]), salu('s_lshr_b32', sT[1], sB, 4), salu('s_mul_i32', sT[1], sT[1], 768), salu('s_add_u32', sP0, sT[1], sT[0]))
        for j in range(6):
            A(bload('buffer_load_dwordx3', R('v', WO[j].i, 3), v(81), SRD_X, sSO, 0, tag='wo'), salu('s_add_u32', sSO, sSO, 16 * 768))
        A(valu('v_lshlrev_b32', v(82), 2, vL), bload('buffer_load_dword', QV, v(82), SRD_Y, sP0, 0, tag='wo'))
        ACC = [v(100 + i) for i in range(6)]; MX = v(106); LX = v(107)
        MS = [v(108 + i) for i in range(4)]; LS = [v(112 + i) for i in range(4)]
        G = [v(160 + 4 * i, 4) for i in range(4)]
        OF = [v(116 + i) for i in range(4)]; PI = v(120); GO = v(121)
        VAL = [s(88 + 2 * i, 2) for i in range(4)]
        sROW = sP1; sC0 = sROLE
        A(valu('v_mov_b32', T0, 0), ds_read('ds_read_b32', T1, T0, CNT + 32), readfirstlane(sRANK, T1),
          salu('s_lshr_b32', sT[0], sW, 1), salu('s_mul_i32', sT[0], sT[0], sN), salu('s_add_u32', sROW, sRANK, sT[0]),
          valu('v_lshrrev_b32', PI, 3, vL), valu('v_and_b32', T0, 7, vL), valu('v_lshlrev_b32', GO, 4, T0),
          salu('s_and_b32', sT[0], sW, 1), salu('s_lshl_b32', sT[0], sT[0], 7), valu('v_add_u32', GO, sT[0], GO))
        A.label('L_rowloop')
        A(salu('s_cmp_ge_u32', sROW, 64)); A.line('    s_cbranch_scc1 L_stageB')
        A(salu('s_mov_b32', sC0, 0))
        vm0 = list(A.vm)
        def chunk(first):
            for j in range(4):
                A(salu('s_add_u32', sT[0], sC0, 8 * j), valu('v_add_u32', T0, sT[0], PI), valu('v_cmp_gt_u32', VAL[j], sN, T0),
                  valu('v_min_u32', T0, 255, T0), valu('v_lshlrev_b32', T0, 2, T0), ds_read('ds_read_b32', OF[j], T0, MEMB))
            for j in range(4):
                A(valu('v_lshl_add_u32', OF[j], OF[j], 14, GO), valu('v_mov_b32', T0, 0x7ffffff0), valu('v_cndmask_b32', OF[j], T0, OF[j], VAL[j]))
            A(salu('s_lshl_b32', sSO, sROW, 8), salu('s_add_u32', sSO, sSO, WS_MA))
            lp = self.lab('pa'); A.label(lp)
            for j in range(4): A(bload('buffer_load_dwordx4', G[j], OF[j], SRD_WS, sSO, 0, 'sc1', tag='g'))
            A.wait_vm()
            for j in range(4):
                A(valu('v_xor_b32', T0, G[j][3], TG), valu('v_cmp_lt_u32', 'vcc', 0xffff, T0),
                  salu('s_and_b64', sM if j == 0 else sM2, 'vcc', VAL[j]))
                if j: A(salu('s_or_b64', sM, sM, sM2))
            ld = self.lab('pd')
            A(salu('s_cmp_eq_u64', sM, 0)); A.line(f'    s_cbranch_scc1 {ld}')
            self.spin_guard(A, lp)
            A.label(ld)
            self.merge(A, G, VAL, ACC, MX, LX, MS, LS, first)
            A(salu('s_add_u32', sC0, sC0, 32))
        chunk(True)
        A.label('L_more')
        A(salu('s_cmp_ge_u32', sC0, sN)); A.line('    s_cbranch_scc1 L_rowdone')
        chunk(False)
        A.line('    s_branch L_more')
        A.label('L_rowdone'); A.flush_hazards(2)
        self.xlane(A, ACC, MX, LX, True)
        OQ = v(176, 4)
        for e in range(3): A(valu('v_cvt_pk_bf16_f32', OQ[e], ACC[2 * e], ACC[2 * e + 1]))
        A(salu('s_mov_b32', sM[0], 0xaaaaaaaa), salu('s_mov_b32', sM[1], 0xaaaaaaaa),
          salu('s_mov_b32', sM2[0], 0xcccccccc), salu('s_mov_b32', sM2[1], 0xcccccccc),
          valu('v_cndmask_b32', T0, MX, LX, sM2), valu('v_lshrrev_b32', T1, 16, T0), valu('v_and_b32', T0, 0xffff, T0),
          valu('v_cndmask_b32', T0, T1, T0, sM), valu('v_or_b32', OQ[3], T0, TG),
          salu('s_lshl_b32', sSO, sROW, 12), salu('s_lshl_b32', sT[0], sXCC, 8), salu('s_add_u32', sSO, sSO, sT[0]), salu('s_add_u32', sSO, sSO, WS_MB),
          salu('s_mov_b64', 'exec', 0xff))
        A(bstore('buffer_store_dwordx4', OQ, GO, SRD_WS, sSO, 0, 'sc1'))
        A(salu('s_mov_b64', 'exec', -1), salu('s_lshl_b32', sT[0], sN, 1), salu('s_add_u32', sROW, sROW, sT[0]))
        A.nop(2)
        A.line('    s_branch L_rowloop')
        A.label('L_stageB'); A.reset_state(vm0 + [('x', set())], [])
        self.stamp()
        WF32 = [v(124 + i) for i in range(36)]
        for j in range(6):
            for e in range(3):
                A(valu('v_lshlrev_b32', WF32[6 * j + 2 * e], 16, WO[j][e]), valu('v_and_b32', WF32[6 * j + 2 * e + 1], 0xffff0000, WO[j][e]))
        A(valu('v_lshrrev_b32', PI, 4, vL), valu('v_and_b32', T0, 15, vL), valu('v_lshlrev_b32', GO, 4, T0),
          salu('s_lshl_b32', sT[0], sW, 4), salu('s_lshr_b32', sT[1], sB, 4), salu('s_add_u32', sT[0], sT[0], sT[1]),
          salu('s_lshl_b32', sSO, sT[0], 12), salu('s_add_u32', sSO, sSO, WS_MB))
        def chunkB(g0, first):
            for j in range(2):
                A(valu('v_add_u32', T0, g0 + 4 * j, PI), valu('v_lshrrev_b32', T1, T0, sGM), valu('v_and_b32', T1, 1, T1),
                  valu('v_cmp_eq_u32', VAL[j], 1, T1), valu('v_lshl_add_u32', OF[j], T0, 8, GO), valu('v_mov_b32', T0, 0x7ffffff0),
                  valu('v_cndmask_b32', OF[j], T0, OF[j], VAL[j]))
            lp = self.lab('pb'); A.label(lp)
            for j in range(2): A(bload('buffer_load_dwordx4', G[j], OF[j], SRD_WS, sSO, 0, 'sc1', tag='g'))
            A.wait_vm()
            for j in range(2):
                A(valu('v_xor_b32', T0, G[j][3], TG), valu('v_cmp_lt_u32', 'vcc', 0xffff, T0),
                  salu('s_and_b64', sM if j == 0 else sM2, 'vcc', VAL[j]))
                if j: A(salu('s_or_b64', sM, sM, sM2))
            ld = self.lab('pe')
            A(salu('s_cmp_eq_u64', sM, 0)); A.line(f'    s_cbranch_scc1 {ld}')
            self.spin_guard(A, lp)
            A.label(ld)
            self.merge(A, G[:2], VAL[:2], ACC, MX, LX, MS, LS, first)
        chunkB(0, True)
        A(salu('s_cmp_lt_u32', sGM, 256)); A.line('    s_cbranch_scc1 L_fin')
        chunkB(8, False)
        A.label('L_fin'); A.flush_hazards(2)
        self.xlane(A, ACC, MX, LX, False)
        A(valu('v_rcp_f32', LX, LX))
        for e in range(6): A(valu('v_mul_f32', ACC[e], ACC[e], LX))
        for e in range(3):
            A(valu('v_cvt_pk_bf16_f32', T0, ACC[2 * e], ACC[2 * e + 1]), valu('v_lshlrev_b32', ACC[2 * e], 16, T0),
              valu('v_and_b32', ACC[2 * e + 1], 0xffff0000, T0))
        O = [v(108 + i) for i in range(6)]
        for j in range(6):
            for n in range(6):
                A(valu('v_mul_f32', O[n], ACC[j], WF32[6 * j + n]) if j == 0 else valu('v_fma_f32', O[n], ACC[j], WF32[6 * j + n], O[n]))
        for sh in ('row_ror:1', 'row_ror:2', 'row_ror:4', 'row_ror:8'):
            for n in range(6): A(valu('v_add_f32_dpp', O[n], O[n], O[n], mods=sh))
        A(valu('v_mul_u32_u24', T0, 24, PI), salu('s_mul_i32', sT[0], sW, 96), salu('s_add_u32', sT[0], sT[0], OUTR), valu('v_add_u32', T0, sT[0], T0),
          valu('v_mov_b32', T1, DUM), valu('v_cmp_eq_u32', 'vcc', 0, GO), valu('v_cndmask_b32', T0, T1, T0))
        for n in range(3): A(ds_write('ds_write_b64', T0, R('v', O[2 * n].i, 2), 8 * n))
        A.barrier()
        A(salu('s_cmp_lg_u32', sW, 0)); A.line('    s_cbranch_scc1 L_out')
        P = [v(160 + 2 * i, 2) for i in range(4)]
        A(valu('v_min_u32', T0, 11, vL), valu('v_lshlrev_b32', T0, 3, T0))
        for w in range(4): A(ds_read('ds_read_b64', P[w], T0, OUTR + 96 * w))
        for e in range(2):
            A(valu('v_add_f32', P[0][e], P[0][e], P[1][e]), valu('v_add_f32', P[2][e], P[2][e], P[3][e]), valu('v_add_f32', P[0][e], P[0][e], P[2][e]))
        A(valu('v_cvt_pk_bf16_f32', T1, P[0][0], P[0][1]), valu('v_lshlrev_b32', P[0][0], 16, T1), valu('v_and_b32', P[0][1], 0xffff0000, T1),
          valu('v_lshlrev_b32', T0, 16, QV), valu('v_and_b32', T1, 0xffff0000, QV), valu('v_add_f32', P[0][0], P[0][0], T0),
          valu('v_add_f32', P[0][1], P[0][1], T1), valu('v_cvt_pk_bf16_f32', T0, P[0][0], P[0][1]), salu('s_mov_b64', 'exec', 0xfff))
        A(bstore('buffer_store_dword', T0, v(82), SRD_Z, sP0, 0))
        A(salu('s_mov_b64', 'exec', -1))
        A.label('L_out')
        self.stamp()
        self.stamp_out()
        A.label('L_end')
        A.line('    s_endpgm')

    def build(self):
        self.prologue()
        A = self.A
        body = A.out
        txt = '\n'.join(body) + '\n' + ''.join(self.tail) + 'L_codeend:\n    s_endpgm\n'
        ninstr = sum(1 for l in txt.split('\n') if l.startswith('    ') and not l.strip().startswith(';'))
        self.ninstr = ninstr
        pad = f'.fill {self.o.pad // 4}, 4, 0xbf810000\n' if self.o.pad else ''
        hdr = open('standalone__detection_seg_mask2former__vision.s.ref').read().split('; Override launch')[0]
        s_ = hdr + f'; @launch grid=(256,1,1) block=(256,1,1) lds={LDS_BYTES}\n' + '.amdgcn_target "amdgcn-amd-amdhsa--gfx950"\n.text\n' + txt + pad
        s_ += f'''.section .rodata,"a"
.p2align 6
.amdhsa_kernel {KN}
  .amdhsa_next_free_vgpr 512
  .amdhsa_next_free_sgpr 102
  .amdhsa_accum_offset 256
  .amdhsa_group_segment_fixed_size 0
  .amdhsa_kernarg_size 96
  .amdhsa_user_sgpr_count 2
  .amdhsa_user_sgpr_kernarg_segment_ptr 1
  .amdhsa_system_sgpr_workgroup_id_x 1
  .amdhsa_float_denorm_mode_32 3
.end_amdhsa_kernel
'''
        return s_


def main():
    ap = argparse.ArgumentParser()
    ap.add_argument('-o', default='k.s')
    ap.add_argument('--dump', default='')
    ap.add_argument('--stamps', action='store_true')
    ap.add_argument('--stampw', type=int, default=0)
    ap.add_argument('--npre-late', type=int, default=2)
    ap.add_argument('--kflag', type=int, default=4)
    ap.add_argument('--wv-start', type=int, default=0)
    ap.add_argument('--wv-per', type=int, default=24)
    ap.add_argument('--tab-step', type=int, default=2)
    ap.add_argument('--fakegrp', type=int, default=0)
    ap.add_argument('--pf-lines', type=int, default=17)
    ap.add_argument('--pad', type=int, default=0)
    o = ap.parse_args()
    g = Gen(o)
    t = g.build()
    open(o.o, 'w').write(t)
    print(f'{o.o}: {g.ninstr} instrs, {g.A.nops} nops', file=sys.stderr)

if __name__ == '__main__':
    main()
```

```python
import re

class R:
    __slots__ = ('k', 'i', 'n', 'mod')
    def __init__(self, k, i, n=1, mod=''):
        self.k, self.i, self.n, self.mod = k, i, n, mod
        lim = {'v': 256, 'a': 256, 's': 102}[k]
        assert 0 <= i and i + n <= lim, (k, i, n)
        if n > 1 and k in 'va': assert i % 2 == 0, ('unaligned tuple', k, i, n)
        if n == 2 and k == 's': assert i % 2 == 0
        if n >= 4 and k == 's': assert i % 4 == 0
    def __str__(self):
        b = f'{self.k}{self.i}' if self.n == 1 else f'{self.k}[{self.i}:{self.i+self.n-1}]'
        if self.mod == '-': return '-' + b
        if self.mod == 'abs': return f'abs({b})'
        return b
    __repr__ = __str__
    def regs(self): return {(self.k, self.i + j) for j in range(self.n)}
    def __getitem__(self, j):
        if isinstance(j, slice):
            st = j.start or 0
            return R(self.k, self.i + st, j.stop - st)
        assert 0 <= j < self.n
        return R(self.k, self.i + j)
    def __neg__(self): return R(self.k, self.i, self.n, '-')

def v(i, n=1): return R('v', i, n)
def a(i, n=1): return R('a', i, n)
def s(i, n=1): return R('s', i, n)

VCC = {('x', 'vcc')}
EXEC = {('x', 'exec')}
M0 = {('x', 'm0')}
SCC = {('x', 'scc')}

def regset(ops):
    out = set()
    for o in ops:
        if isinstance(o, R): out |= o.regs()
        elif isinstance(o, str):
            if o == 'vcc': out |= VCC
            elif o in ('exec', 'exec_hi', 'exec_lo'): out |= EXEC
            elif o == 'm0': out |= M0
    return out

TRANS = ('v_exp_f32', 'v_log_f32', 'v_rcp_f32', 'v_rsq_f32', 'v_sqrt_f32')

class Ins:
    __slots__ = ('text', 'kind', 'rd', 'wr', 'tag', 'srcc', 'passes', 'extra')
    def __init__(self, text, kind, rd=(), wr=(), tag=None, srcc=(), passes=0, extra=None):
        self.text, self.kind, self.rd, self.wr, self.tag = text, kind, set(rd), set(wr), tag
        self.srcc, self.passes, self.extra = set(srcc), passes, extra

def fmt(x):
    if isinstance(x, float):
        import struct
        if x in (0.5, 1.0, 2.0, 4.0, -0.5, -1.0, -2.0, -4.0): return repr(x)
        if x == 0.0: return '0'
        return '0x%08x' % struct.unpack('<I', struct.pack('<f', x))[0]
    if isinstance(x, int):
        return str(x) if -16 <= x <= 64 else ('0x%x' % (x & 0xffffffff))
    return str(x)

def valu(op, dst, *src, mods='', rmw=False):
    kind = 'trans' if op in TRANS else 'valu'
    rd = regset(src); wr = regset([dst])
    if rmw or op.startswith('v_fmac') : rd |= regset([dst])
    if op.startswith('v_cndmask') and len(src) == 2:
        rd |= VCC; text = f'{op} {dst}, {fmt(src[0])}, {fmt(src[1])}, vcc'
    else:
        text = f'{op} {dst}, ' + ', '.join(fmt(x) for x in src)
    extra = None
    if 'row_' in mods or 'quad_perm' in mods:
        extra = 'dpp'
        if 'row_mask' not in mods: mods += ' row_mask:0xf bank_mask:0xf'
    if mods: text += ' ' + mods
    return Ins(text, kind, rd, wr, extra=extra)

def permswap(op, x, y):
    return Ins(f'{op} {x}, {y}', 'valu', regset([x, y]), regset([x, y]), extra='permlane')

def readfirstlane(sd, vs):
    return Ins(f'v_readfirstlane_b32 {sd}, {vs}', 'valu', regset([vs]), regset([sd]), extra='readlane')

def readlane(sd, vs, lane):
    return Ins(f'v_readlane_b32 {sd}, {vs}, {fmt(lane)}', 'valu', regset([vs, lane]), regset([sd]), extra='readlane')

def salu(op, dst, *src):
    rd = regset(src); wr = regset([dst]) if dst is not None else set()
    if op.startswith('s_cmp') or op.startswith('s_bitcmp'):
        text = f'{op} ' + ', '.join(fmt(x) for x in ((dst,) + src)); rd = regset((dst,) + src); wr = set(SCC)
    else:
        text = f'{op} {dst}, ' + ', '.join(fmt(x) for x in src)
        if 'saveexec' in op: wr |= EXEC; rd |= EXEC
    return Ins(text, 'salu', rd, wr)

def mfma16(d, A, B, c):
    cc = c if isinstance(c, R) else None
    return Ins(f'v_mfma_f32_16x16x32_bf16 {d}, {A}, {B}, {fmt(c)}', 'mfma', regset([A, B, c]), regset([d]),
               srcc=regset([c]) if cc else (), passes=4, extra=(d.k, d.i, d.n, cc is not None and (cc.k, cc.i, cc.n) == (d.k, d.i, d.n)))

def mfma32(d, A, B, c):
    cc = c if isinstance(c, R) else None
    return Ins(f'v_mfma_f32_32x32x16_bf16 {d}, {A}, {B}, {fmt(c)}', 'mfma', regset([A, B, c]), regset([d]),
               srcc=regset([c]) if cc else (), passes=8, extra=(d.k, d.i, d.n, cc is not None and (cc.k, cc.i, cc.n) == (d.k, d.i, d.n)))

def ds_read(op, dst, addr, off=0, tag=None):
    assert 0 <= off < 65536, off
    return Ins(f'{op} {dst}, {addr}' + (f' offset:{off}' if off else ''), 'ds_read', regset([addr]), regset([dst]), tag=tag)

def ds_write(op, addr, data, off=0, tag=None):
    assert 0 <= off < 65536, off
    return Ins(f'{op} {addr}, {data}' + (f' offset:{off}' if off else ''), 'ds_write', regset([addr, data]), set(), tag=tag)

def ds_bperm(dst, addr, src, tag=None):
    return Ins(f'ds_bpermute_b32 {dst}, {addr}, {src}', 'ds_read', regset([addr, src]), regset([dst]), tag=tag)

def bload(op, dst, voff, srd, soff, off=0, flags='', tag=None):
    assert 0 <= off < 4096, off
    t = f'{op} {dst}, {voff}, {srd}, {fmt(soff)} offen' + (f' offset:{off}' if off else '') + (f' {flags}' if flags else '')
    return Ins(t, 'vm_load', regset([voff, srd, soff]), regset([dst]), tag=tag)

def bload_lds(voff, srd, soff, off=0, flags='', tag=None):
    assert 0 <= off < 4096, off
    t = f'buffer_load_dwordx4 {voff}, {srd}, {fmt(soff)} offen' + (f' offset:{off}' if off else '') + (f' {flags}' if flags else '') + ' lds'
    return Ins(t, 'vm_dma', regset([voff, srd, soff]) | M0, set(), tag=tag)

def bstore(op, data, voff, srd, soff, off=0, flags='', tag=None):
    assert 0 <= off < 4096, off
    t = f'{op} {data}, {voff}, {srd}, {fmt(soff)} offen' + (f' offset:{off}' if off else '') + (f' {flags}' if flags else '')
    return Ins(t, 'vm_store', regset([data, voff, srd, soff]), set(), tag=tag, extra=('wide', data.regs()) if data.n >= 3 else None)

def batomic(op, data, voff, srd, soff, off=0, flags='', ret=False, tag=None):
    t = f'{op} {data}, {voff}, {srd}, {fmt(soff)} offen' + (f' offset:{off}' if off else '') + (f' {flags}' if flags else '')
    return Ins(t, 'vm_load' if ret else 'vm_store', regset([data, voff, srd, soff]), regset([data]) if ret else set(), tag=tag)

def gload(op, dst, vaddr, off=0, tag=None):
    return Ins(f'{op} {dst}, {vaddr}, off' + (f' offset:{off}' if off else ''), 'vm_load', regset([vaddr]), regset([dst]), tag=tag)

def smem(op, dst, base, off):
    return Ins(f'{op} {dst}, {base}, {fmt(off)}', 'smem', regset([base]), regset([dst]))

def raw(text, kind='other', rd=(), wr=()):
    return Ins(text, kind, regset(rd), regset(wr))

class WaitVM:
    def __init__(self, tag): self.tag = tag
class WaitLG:
    def __init__(self, tag=None): self.tag = tag
class Barrier: pass

class Asm:
    def __init__(self):
        self.out = []
        self.clock = 0
        self.vm = []
        self.lg = []
        self.ev = {}
        self.nops = 0
        self.pair_min = 4; self.pair_extra = 1
        self.count = 0
    def line(self, t):
        self.out.append(t)
    def comment(self, t): self.out.append('    ; ' + t)
    def label(self, name): self.out.append(name + ':')
    def _tick(self, n=1): self.clock += n
    def nop(self, n):
        while n > 0:
            k = min(n, 16)
            self.out.append(f'    s_nop {k-1}'); self._tick(k); n -= k; self.nops += 1
    def _waitcnt(self, vm=None, lg=None):
        t = 's_waitcnt'
        if vm is not None:
            t += f' vmcnt({vm})'; self.vm = self.vm[len(self.vm) - vm:] if vm else []
        if lg is not None:
            t += f' lgkmcnt({lg})'; self.lg = self.lg[len(self.lg) - lg:] if lg else []
        self.out.append('    ' + t); self._tick()
    def wait_vm(self, tag=None, also_lg=False):
        if tag is None: idx = len(self.vm) - 1
        else:
            idx = max([i for i, e in enumerate(self.vm) if e[0] == tag], default=-1)
        if idx < 0:
            if also_lg and self.lg: self._waitcnt(lg=0)
            return
        n = len(self.vm) - 1 - idx
        self._waitcnt(vm=min(n, 63), lg=0 if (also_lg and self.lg) else None)
    def wait_lg(self, tag=None):
        if tag is None: idx = len(self.lg) - 1
        else: idx = max([i for i, e in enumerate(self.lg) if e[0] == tag], default=-1)
        if idx < 0: return
        n = len(self.lg) - 1 - idx
        if any(e[2] for e in self.lg): n = 0
        self._waitcnt(lg=min(n, 15))
    def barrier(self, drain_lds=True):
        if drain_lds:
            if self.lg: self._waitcnt(lg=0)
        self.out.append('    s_barrier'); self._tick()
    def flush_hazards(self, n=16):
        self.nop(n); self.ev = {}
    def reset_state(self, vm=(), lg=()):
        self.vm = list(vm); self.lg = list(lg); self.ev = {}
    def _need(self, ins):
        need = 0
        def since(c): return self.clock - c
        k = ins.kind
        is_valu = k in ('valu', 'trans')
        is_mem = k in ('ds_read', 'ds_write', 'vm_load', 'vm_store', 'vm_dma')
        for r in ins.rd:
            for (t, c, p, info) in self.ev.get(r, ()):
                w = 0
                if t == 'valu_w':
                    if r[0] in 'va':
                        if k == 'mfma': w = 2
                        elif ins.extra == 'dpp' or ins.extra == 'permlane': w = 2
                        elif ins.extra == 'readlane': w = 1
                        if info == 'trans' and is_valu and k != 'trans': w = max(w, 1)
                        if info == 'trans' and k == 'trans': w = max(w, 1)
                    else:
                        if is_valu: w = 4 if ins.extra == 'readlane' else 2
                        elif k.startswith('vm'): w = 5
                        elif k == 'salu' or k == 'other': w = 1
                elif t == 'mfma_w':
                    if k == 'mfma':
                        if r in ins.srcc:
                            same = ins.extra[3] and info == ins.extra[:3] and p == ins.passes
                            w = 0 if same else {4: 6, 8: 10}[p]
                            if r in (ins.rd - ins.srcc): w = {4: 8, 8: 12}[p]
                        else: w = {4: 8, 8: 12}[p]
                    else: w = {4: 8, 8: 12}[p]
                elif t == 'salu_w':
                    if r == ('x', 'm0') and k == 'vm_dma': w = 1
                need = max(need, w - since(c))
        for r in ins.wr:
            for (t, c, p, info) in self.ev.get(r, ()):
                w = 0
                if t == 'mfma_w':
                    if k == 'mfma':
                        same = ins.extra[3] and info == ins.extra[:3] and p == ins.passes
                        w = 0 if same else {4: 8, 8: 12}[p]
                    else: w = {4: 8, 8: 12}[p]
                elif t == 'mfma_c' and (is_valu or is_mem):
                    w = {4: 3, 8: 7}[p]
                elif t == 'store_data' and (is_valu or k in ('ds_read', 'vm_load', 'mfma')):
                    w = 2
                need = max(need, w - since(c))
        return need
    def _record(self, ins):
        k = ins.kind; c = self.clock
        def add(r, e, replace):
            l = self.ev.setdefault(r, [])
            l[:] = [x for x in l if x[0] not in replace and self.clock - x[1] < 24]
            l.append(e)
        if k in ('valu', 'trans'):
            for r in ins.wr: add(r, ('valu_w', c, 0, 'trans' if k == 'trans' else None), ('valu_w',))
        elif k == 'mfma':
            for r in ins.wr: add(r, ('mfma_w', c, ins.passes, ins.extra[:3]), ('mfma_w', 'valu_w'))
            for r in ins.srcc: add(r, ('mfma_c', c, ins.passes, None), ('mfma_c',))
        elif k == 'salu':
            for r in ins.wr: add(r, ('salu_w', c, 0, None), ('salu_w', 'valu_w'))
        elif k == 'vm_store' and ins.extra:
            for r in ins.extra[1]: add(r, ('store_data', c, 0, None), ('store_data',))
    def emit(self, ins):
        if isinstance(ins, (list, tuple)):
            for x in ins: self.emit(x)
            return
        if isinstance(ins, WaitVM): return self.wait_vm(ins.tag)
        if isinstance(ins, WaitLG): return self.wait_lg(ins.tag)
        if isinstance(ins, Barrier): return self.barrier()
        if callable(ins): return ins(self)
        touched = ins.rd | ins.wr
        vi = max([i for i, e in enumerate(self.vm) if e[1] & touched], default=-1)
        li = max([i for i, e in enumerate(self.lg) if e[1] & touched], default=-1)
        if vi >= 0 or li >= 0:
            vmn = min(len(self.vm) - 1 - vi, 63) if vi >= 0 else None
            lgn = None
            if li >= 0:
                lgn = len(self.lg) - 1 - li
                if any(e[2] for e in self.lg): lgn = 0
                if ins.kind == 'mfma' and lgn >= self.pair_min: lgn -= self.pair_extra
                lgn = min(lgn, 15)
            self._waitcnt(vm=vmn, lg=lgn)
        n = self._need(ins)
        if n > 0: self.nop(n)
        self.out.append('    ' + ins.text); self.count += 1
        self._tick()
        self._record(ins)
        if ins.kind in ('vm_load', 'vm_store', 'vm_dma'):
            self.vm.append((ins.tag, ins.wr if ins.kind == 'vm_load' else set()))
            assert len(self.vm) <= 63 + 64, 'vm queue tracking too long'
        elif ins.kind in ('ds_read', 'ds_write'):
            self.lg.append((ins.tag, ins.wr, False))
        elif ins.kind == 'smem':
            self.lg.append((None, ins.wr, True))
    def __call__(self, *ins):
        for x in ins: self.emit(x)
    def text(self): return '\n'.join(self.out) + '\n'

def interleave(main, fill):
    out = list(fill.get(-1, []))
    for i, m in enumerate(main):
        out.append(m)
        out.extend(fill.get(i, []))
    for k in sorted(fill):
        if k >= len(main): out.extend(fill[k])
    return out

def spread(fill, seq, start, per=1, step=1):
    sl = start; j = 0
    while j < len(seq):
        fill.setdefault(sl, []).extend(seq[j:j + per]); j += per; sl += step
    return sl

def spread_groups(fill, groups, start, step):
    sl = start
    for g in groups:
        if len(g) > 1: fill.setdefault(sl - 1, []).extend(g[:-1])
        fill.setdefault(sl, []).append(g[-1]); sl += step
    return sl
```

```python
import sys, math, argparse
from asmlib import *

KN = 'standalone__detection_seg_mask2former__vision_kernel'
LOG2E = 1.4426950408889634
S1 = 96 ** -0.5 * LOG2E
S2 = 384 ** -0.5 * LOG2E
THR = 30.0

S0, MISC, SL1, R0 = 0, 49152, 65536, 114688
PH = MISC; PL = PH + 8192; RR = PL + 4096; RM = RR + 256; ONES = RM + 256; AL = ONES + 768
FL = AL + 256; CNT = FL + 64; DUM = FL + 256; MEMB = DUM + 512
MLM = RR; MLL = RM; OUTR = ONES
STAMP = MISC + 16128
assert MEMB + 1024 <= STAMP and ONES % 256 == 0
LDS_BYTES = 163840
WS_A = 0; WS_V = 65536; WS_TAB = 0x60000; WS_MA = 0x100000; WS_MB = 0x500000; WS_DUMP = 0x1000000; WS_STAMP = 0x8000000
WS_BYTES = 268435456
DB_A = 32; DB_V = 36; DB_EP = 37

sW = s(3); sB = s(2)
sT = [s(i) for i in range(4, 8)]
SRD_HI = s(8, 4); SRD_LO = s(12, 4); SRD_WL = s(16, 4); SRD_WS = s(20, 4); SRD_DB = s(24, 4)
SRD_X = s(28, 4); SRD_Y = s(32, 4); SRD_Z = s(36, 4)
sHI = s(40)
sSO = s(41); sSO2 = s(42)
sWB = s(43)
sVF = s(0); sXB = s(101); sWS = s(98); sROW = s(99); sSOA = s(80); sSOB = s(81); sC0 = s(100)
VAL = [s(66 + 2 * i, 2) for i in range(4)]; VALB = [s(74, 2), s(76, 2)]
sEP = s(44); sTAG = s(45); sXCC = s(46); sN = s(47); sRANK = s(48); sGM = s(49)
sM = s(50, 2); sM2 = s(52, 2); sSV = s(54, 2); sCNT = s(56); sROLE = s(57); sP0 = s(58); sP1 = s(59)
sST = 60
PQ, PHI, PLO, PWL, PWQ, PWK, PWV, PWO = [s(64 + 2 * i, 2) for i in range(8)]
PWM, POUT, PDB, PWS = [s(80 + 2 * i, 2) for i in range(4)]
sK = [s(i) for i in range(88, 100)]

vTID = v(0); vL = v(1)
XG = [v(2 + i) for i in range(6)]
XA = [v(8 + i) for i in range(4)]
XO = [v(12 + i) for i in range(4)]
XT = [v(16 + i) for i in range(6)]
XW = v(22); FLA = XW
CA = [v(23 + i) for i in range(4)]
PHW = [v(27 + i) for i in range(4)]
PHR = [v(31 + i) for i in range(4)]
PLW = v(35); CD = v(36); T0 = v(37); T1 = v(38)
PLR = [v(39), v(40)]
RRD = v(41); RWR = v(42)
LT = [v(43 + i) for i in range(6)]
LIN = v(49)
SLO = [v(50 + 4 * i, 4) for i in range(4)]
LSQ = v(66, 4); LSM = v(70, 4)
MREF = v(74); LSUM = v(75); SUMA = v(76); EMAX = v(77)
POOL = [[v(78 + 2 * g), v(79 + 2 * g)] for g in range(4)]
LST = v(86); T2 = v(87)
RING = [v(88 + 4 * i, 4) for i in range(8)]
SACC = [v(120 + 4 * i, 4) for i in range(4)]
GA = v(136, 4); CX = v(140, 4)
RB = [(v(144, 4), v(148, 4)), (v(152, 4), v(156, 4))]
UACC = [[v(160 + 16 * (2 * ct + nu), 16) for nu in range(2)] for ct in range(3)]
LACC = [[v(160 + 4 * (6 * mu + j), 4) for j in range(6)] for mu in range(4)]
WF = [[v(56 + 24 * b + 4 * j, 4) for j in range(6)] for b in range(2)]
FF = [[v(104 + 16 * b + 4 * m, 4) for m in range(4)] for b in range(2)]
FA = [v(144 + i) for i in range(4)]
WD = [v(148 + i) for i in range(3)]
WT = [v(136 + i) for i in range(6)]
FDB = v(153)
AFR = [a(4 * i, 4) for i in range(12)]
STG = [[a(48 + 48 * b + 4 * i, 4) for i in range(12)] for b in range(4)]
SPARE = [a(240 + 4 * i, 4) for i in range(4)]


def flat(rho):
    b0, b1, b2, b3 = rho & 1, (rho >> 1) & 1, (rho >> 2) & 1, (rho >> 3) & 1
    return 8 * (b2 ^ b3) + 4 * b0 + 2 * b1 + b2


def srd(A, dst, ptr, nbytes):
    A(salu('s_mov_b32', dst[0], ptr[0]), salu('s_and_b32', dst[1], ptr[1], 0xffff),
      salu('s_mov_b32', dst[2], nbytes), salu('s_mov_b32', dst[3], 0x20000))


class Gen:
    def __init__(self, o):
        self.o = o
        self.A = Asm()
        self.tail = []
        self.uid = 0
        self.nstamp = 0

    def lab(self, p):
        self.uid += 1
        return f'L_{p}_{self.uid}'

    def stamp(self, A=None, fine=False):
        if not self.o.stamps: return
        if (self.o.fine >= 0) != fine and self.nstamp > 0: return
        A = A or self.A
        i = self.nstamp; self.nstamp += 1
        assert i < 16
        A.line('    s_memtime s[60:61]' if self.o.cyc else '    s_memrealtime s[60:61]')
        A.line(f'    s_lshl_b32 s62, s3, 6')
        A.line(f'    s_waitcnt lgkmcnt(0)'); A.lg = []
        X2 = v(154) if self.o.fine == 11 else T2
        A.line(f'    v_mov_b32 {T1}, s60')
        A.line(f'    v_mov_b32 {X2}, s62')
        A.line(f'    ds_write_b32 {X2}, {T1} offset:{STAMP + 4 * i}')
        A.line(f'    s_waitcnt lgkmcnt(0)')
        A.clock += 7

    def stamp_out(self):
        if not self.o.stamps: return
        A = self.A
        l = self.lab('nst')
        A.wait_vm()
        A(salu('s_cmp_lg_u32', sW, self.o.stampw)); A.line(f'    s_cbranch_scc1 {l}')
        A(valu('v_lshlrev_b32', T0, 2, vL), salu('s_lshl_b32', sT[0], sW, 6), valu('v_add_u32', T0, sT[0], T0), ds_read('ds_read_b32', v(160), T0, STAMP),
          valu('v_mov_b32', v(161), 0), valu('v_lshlrev_b32', T0, 3, vL),
          salu('s_lshl_b32', sT[0], sB, 7), salu('s_add_u32', sT[0], sT[0], WS_STAMP), salu('s_mov_b64', 'exec', 0xffff))
        A(bstore('buffer_store_dwordx2', v(160, 2), T0, SRD_WS, sT[0]))
        A(salu('s_mov_b64', 'exec', -1))
        A.wait_vm()
        A.label(l)

    def dump_lds(self, base, nbytes):
        A = self.A
        A.wait_vm(); A.barrier()
        A(valu('v_lshlrev_b32', T0, 4, vTID), salu('s_mul_i32', sT[0], sB, nbytes), salu('s_add_u32', sT[0], sT[0], WS_DUMP))
        A(valu('v_add_u32', T1, base, T0))
        for i in range(nbytes // 4096):
            A(ds_read('ds_read_b128', RING[0], T1, 0), bstore('buffer_store_dwordx4', RING[0], T0, SRD_WS, sT[0]),
              salu('s_add_u32', sT[0], sT[0], 4096), valu('v_add_u32', T1, 4096, T1))
            A.wait_vm()
        A.line('    s_endpgm')

    def dump_regs(self, regs):
        A = self.A
        A.wait_vm(); A.wait_lg(); A.flush_hazards()
        n = len(regs)
        A(valu('v_lshlrev_b32', T0, 2, vTID), salu('s_mul_i32', sT[0], sB, n * 1024), salu('s_add_u32', sT[0], sT[0], WS_DUMP))
        for r in regs:
            if r.k == 'a':
                A(valu('v_accvgpr_read_b32', T1, r)); r = T1
            A(bstore('buffer_store_dword', r, T0, SRD_WS, sT[0]), salu('s_add_u32', sT[0], sT[0], 1024))
            A.wait_vm()
        A.line('    s_endpgm')

    def allreduce_g(self, A, op, x, t):
        A(valu('v_mov_b32', t, x), permswap('v_permlane16_swap_b32', t, x), valu(op, x, x, t),
          valu('v_mov_b32', t, x), permswap('v_permlane32_swap_b32', t, x), valu(op, x, x, t))

    def spin_guard(self, A, label_retry):
        A(salu('s_add_u32', sCNT, sCNT, 1), salu('s_cmp_lt_u32', sCNT, 400000))
        A.line(f'    s_cbranch_scc1 {label_retry}')

    def prologue(self):
        A = self.A; o = self.o
        A.line(f'.globl {KN}\n.p2align 8\n.type {KN},@function\n{KN}:')
        A(salu('s_cmp_ge_u32', sB, 256)); A.line('    s_cbranch_scc1 L_end')
        A(smem('s_load_dwordx16', s(64, 16), s(0, 2), 0), smem('s_load_dwordx8', s(80, 8), s(0, 2), 64))
        A(valu('v_lshrrev_b32', T0, 6, vTID), valu('v_and_b32', vL, 63, vTID), readfirstlane(sW, T0),
          valu('v_lshlrev_b32', LIN, 4, vL), salu('s_mov_b32', sCNT, 0))
        A.nop(1)
        self.stamp()
        l = self.lab('cp')
        A(salu('s_cmp_lg_u32', sW, 2)); A.line(f'    s_cbranch_scc1 {l}')
        A.line('    s_getpc_b64 s[4:5]\nL_pc:')
        A.line(f'    s_lshr_b32 s6, s2, 3\n    s_mul_i32 s6, s6, {o.pf_lines}\n    v_min_u32 v56, {o.pf_lines - 1}, v1\n    v_add_u32 v56, s6, v56')
        A.line('    v_lshlrev_b32 v56, 7, v56\n    v_min_u32 v56, L_codeend-L_pc, v56\n    v_mov_b32 v57, s5\n    v_add_co_u32 v56, vcc, s4, v56')
        A.line('    s_nop 1\n    v_addc_co_u32 v57, vcc, 0, v57, vcc\n    global_load_dword v157, v[56:57], off')
        A.label(l)
        A.vm.append(('junk', v(157).regs()))
        self.role()

    def touch(self, waves, nlines, srd_, sbase, reg):
        A = self.A
        l = self.lab('tc')
        w0, w1 = waves
        if w0 == 0:
            A(valu('v_min_u32', T0, nlines - 1, vTID), salu('s_cmp_ge_u32', sW, w1))
        else:
            A(valu('v_min_u32', T0, nlines - 1, vL), salu('s_cmp_lg_u32', sW, w0))
        A(valu('v_lshlrev_b32', T0, 7, T0))
        A.line(f'    s_cbranch_scc1 {l}')
        A.line(f'    buffer_load_dword {reg}, {T0}, {srd_}, {sbase} offen')
        A.label(l)
        A.vm.append(('junk', reg.regs())); A.clock += 1

    def w_touch(self, reg=159):
        A = self.A
        A(salu('s_lshr_b32', sT[0], sB, 3), salu('s_mul_i32', sT[0], sT[0], 9216))
        self.touch((0, 2), 72, SRD_WL, sT[0], v(reg))

    def rows_dma(self, srd_, rows, ssrc, slds, flags, tag):
        A = self.A
        A(salu('s_mov_b32', 'exec_hi', 0xffff))
        for (so, lo, f) in rows:
            A(salu('s_add_u32', 'm0', slds, lo), salu('s_add_u32', sSO, ssrc, so))
            if isinstance(f, R) or f: A(valu('v_xor_b32', T0, f if isinstance(f, R) else 16 * f, LIN))
            A(bload_lds(T0 if (isinstance(f, R) or f) else LIN, srd_, sSO, 0, flags, tag=tag))
        A(salu('s_mov_b32', 'exec_hi', -1))

    def flo_dma(self):
        A = self.A
        A(salu('s_mul_i32', sT[2], sB, 49152), salu('s_mul_i32', sT[0], sW, 3072), salu('s_add_u32', sT[2], sT[2], sT[0]),
          salu('s_mul_i32', sT[1], sW, 12288), salu('s_add_u32', sT[1], sT[1], R0))
        rows = [((16 * (r & 3) + (r >> 2)) * 768, r * 768, flat(r)) for r in range(16)]
        self.rows_dma(SRD_LO, rows, sT[2], sT[1], 'nt', 'flo')

    def common_srds(self):
        A = self.A
        srd(A, SRD_HI, PHI, 50331648); srd(A, SRD_WS, PWS, WS_BYTES); srd(A, SRD_DB, PDB, 256)

    def addr_setup1(self):
        A = self.A
        RH = v(60)
        A(salu('s_mov_b32', sK[0], 196608))
        for b in range(3):
            A(valu('v_add_u32', T0, 64 * b, vL), valu('v_mul_u32_u24', T1, 1366, T0), valu('v_lshrrev_b32', RH, 16, T1),
              valu('v_mul_u32_u24', T1, 48, RH), valu('v_sub_u32', T0, T0, T1),
              valu('v_lshlrev_b32', T1, 2, RH), valu('v_xor_b32', T0, T0, T1), valu('v_lshlrev_b32', T0, 4, T0),
              valu('v_and_b32', T1, 1, RH), valu('v_mul_u32_u24', T1, 768, T1), valu('v_add_u32', T0, T0, T1),
              valu('v_lshrrev_b32', T1, 1, RH), valu('v_mul_lo_u32', T1, T1, sK[0]), valu('v_add_u32', XG[b], T0, T1))
            if b: A(valu('v_subrev_u32', XG[b], 1024 * b, XG[b]))
            A(valu('v_xor_b32', XG[3 + b], 32, XG[b]))
        A(salu('s_lshr_b32', sT[0], sB, 1), salu('s_mul_i32', sHI, sT[0], 393216), salu('s_and_b32', sT[0], sB, 1),
          salu('s_mul_i32', sT[0], sT[0], 98304), salu('s_add_u32', sHI, sHI, sT[0]), salu('s_mul_i32', sT[0], sW, 6144),
          salu('s_add_u32', sHI, sHI, sT[0]))

    def wd_setup(self, rowstride, dst, colw):
        A = self.A
        for b in range(3):
            A(valu('v_add_u32', T0, 64 * b, vL), valu('v_mul_u32_u24', T1, 5462, T0), valu('v_lshrrev_b32', T1, 16, T1),
              valu('v_mul_u32_u24', T2, 12, T1), valu('v_sub_u32', T0, T0, T2),
              valu('v_lshrrev_b32', T2, 2, T1), valu('v_and_b32', T2, 2, T2), valu('v_xor_b32', T0, T0, T2),
              valu('v_lshlrev_b32', T0, 4, T0), valu('v_mul_u32_u24', T1, rowstride, T1), valu('v_add_u32', dst[b], T0, T1))
        if colw:
            A(salu('s_mul_i32', sT[0], sW, 192))
            for b in range(3): A(valu('v_add_u32', dst[b], sT[0], dst[b]))

    def wtr_setup(self, wa, wb):
        A = self.A
        A(valu('v_lshrrev_b32', T0, 4, vL), valu('v_lshlrev_b32', T1, 3, T0), valu('v_bfe_u32', T2, vL, 2, 2),
          valu('v_add_u32', T1, T1, T2), valu('v_mul_u32_u24', T1, 192, T1), valu('v_and_b32', T2, 3, vL),
          valu('v_lshl_add_u32', T1, T2, 3, T1), valu('v_and_b32', T0, 1, T0), valu('v_lshlrev_b32', T0, 5, T0),
          valu('v_add_u32', wa, T1, T0), valu('v_sub_u32', wb, T1, T0))

    def fa_setup(self, dst, base):
        A = self.A
        A(valu('v_and_b32', T0, 15, vL),
          valu('v_lshrrev_b32', T1, 2, T0), valu('v_lshrrev_b32', T2, 3, T0), valu('v_xor_b32', T2, T1, T2),
          valu('v_and_b32', T2, 1, T2), valu('v_lshlrev_b32', T2, 3, T2), valu('v_and_b32', T1, 1, T1), valu('v_or_b32', T2, T2, T1),
          valu('v_and_b32', T1, 1, T0), valu('v_lshl_or_b32', T2, T1, 2, T2), valu('v_and_b32', T1, 2, T0), valu('v_or_b32', T2, T2, T1),
          valu('v_lshrrev_b32', T1, 4, vL), valu('v_xor_b32', T2, T2, T1), valu('v_lshlrev_b32', T2, 4, T2),
          valu('v_mul_u32_u24', T0, 768, T0), valu('v_add_u32', T0, base, T0))
        for j in range(4):
            A(valu('v_xor_b32', T1, 64 * j, T2), valu('v_add_u32', dst[j], T0, T1))

    def x_loads(self, t, buf):
        L = []
        for g in range(4):
            for b in range(3):
                G = [salu('s_add_u32', sSO2, sHI, t * 16 * 1536 + g * 1536)] if b == 0 else []
                G.append(bload('buffer_load_dwordx4', STG[buf][3 * g + b], XG[3 * (g & 1) + b], SRD_HI, sSO2, 1024 * b, 'nt', tag=f'x{t}'))
                L.append(G)
        return L

    def x_dma(self, t):
        L = []
        for g in range(4):
            for b in range(3):
                G = [salu('s_add_u32', 'm0', sXB, (t & 1) * 65536 + 3 * g * 1024), salu('s_add_u32', sSO2, sHI, t * 16 * 1536 + g * 1536)] if b == 0 else []
                G.append(bload_lds(XG[3 * (g & 1) + b], SRD_HI, sSO2, 1024 * b, 'nt', tag=f'x{t}'))
                L.append(G)
        return L

    def w_dma(self, ks):
        L = []
        pc = ks % 4
        for i in range(6):
            g = []
            if i % 3 == 0:
                g.append(salu('s_add_u32', 'm0', sWB, (pc & 1) * 24576 + (pc >> 1) * 65536 + i * 1024))
                g.append(salu('s_add_u32', sSO, sWS, ks * 24576 + (i // 3) * 3072))
            g.append(bload_lds(WD[i % 3], SRD_WL, sSO, 1024 * (i % 3), '', tag=f'w{ks}'))
            L.append(g)
        return L

    def w_setup(self):
        A = self.A
        RH = v(60); FW = v(61); RW = v(62)
        A(salu('s_mul_i32', sWB, sW, 6144), salu('s_mov_b32', sWS, sWB), salu('s_and_b32', sT[0], sW, 1), salu('s_lshl_b32', sT[0], sT[0], 3))
        for b in range(3):
            A(valu('v_add_u32', T0, 64 * b, vL), valu('v_mul_u32_u24', T1, 1366, T0), valu('v_lshrrev_b32', RH, 16, T1),
              valu('v_mul_u32_u24', T1, 48, RH), valu('v_sub_u32', T0, T0, T1),
              valu('v_lshl_or_b32', T1, RH, 1, sT[0]), valu('v_xor_b32', T0, T0, T1), valu('v_mul_u32_u24', T1, 768, RH),
              valu('v_lshl_add_u32', WD[b], T0, 4, T1))
            if b: A(valu('v_subrev_u32', WD[b], 1024 * b, WD[b]))
        A(valu('v_lshrrev_b32', T0, 4, vL), valu('v_bfe_u32', T1, vL, 2, 2), valu('v_lshl_add_u32', RW, T0, 3, T1), valu('v_mul_u32_u24', RW, 768, RW),
          valu('v_and_b32', T2, 1, vL), valu('v_lshl_add_u32', RW, T2, 3, RW),
          valu('v_and_b32', T0, 1, T0), valu('v_lshlrev_b32', T0, 3, T0), valu('v_lshl_or_b32', FW, T1, 1, T0),
          valu('v_bfe_u32', T2, vL, 1, 1), salu('s_mul_i32', sT[0], sW, 12), valu('v_add_u32', T2, sT[0], T2))
        for j in range(6):
            A(valu('v_add_u32', T0, 2 * j, T2), valu('v_xor_b32', T0, T0, FW), valu('v_lshl_add_u32', WT[j], T0, 4, RW))

    def role(self):
        A = self.A; o = self.o
        A(salu('s_lshr_b32', sROLE, sB, 4), salu('s_bfe_u32', sP0, sB, 0x20001), salu('s_bitcmp1_b32', sB, 3))
        A.line('    s_cbranch_scc0 L_early')
        A(salu('s_cmp_lt_u32', sROLE, 6)); A.line('    s_cbranch_scc1 L_prodA')
        A(salu('s_cmp_lt_u32', sROLE, 9)); A.line('    s_cbranch_scc1 L_prodV')
        st = (list(A.vm), list(A.lg))
        self.prod_touch()
        srd(A, SRD_WL, PWL, 294912); self.w_touch()
        srd(A, SRD_LO, PLO, 12582912); self.flo_dma(); self.common_srds(); self.addr_setup1(); self.setup_all()
        for t in range(o.npre_late): A(self.x_loads(t, t))
        A.line('    s_branch L_late')
        A.reset_state(*st); A.label('L_prodA'); self.prodA()
        A.line('    s_branch L_emain')
        A.reset_state(*st); A.label('L_prodV'); self.prodV()
        A.line('    s_branch ' + ('L_late' if o.pv_late else 'L_emain'))
        A.reset_state(*st); A.label('L_early')
        srd(A, SRD_X, PWQ, 294912)
        A(salu('s_mul_i32', sT[0], sP0, 73728), salu('s_mul_i32', sT[1], sROLE, 36 * 128), salu('s_add_u32', sT[0], sT[0], sT[1]))
        self.touch((3, 4), 36, SRD_X, sT[0], v(158))
        srd(A, SRD_LO, PLO, 12582912); self.flo_dma()
        srd(A, SRD_WL, PWL, 294912); self.w_touch()
        self.common_srds()
        l = self.lab('ep')
        A(salu('s_or_b32', sT[0], sB, sW), salu('s_cmp_lg_u32', sT[0], 0)); A.line(f'    s_cbranch_scc1 {l}')
        A.line('    s_memrealtime s[6:7]\n    s_waitcnt lgkmcnt(0)\n    s_or_b32 s6, s6, 1\n    v_mov_b32 v56, s6\n    v_mov_b32 v55, 0')
        A.line(f'    s_mov_b64 exec, 1\n    buffer_store_dword v56, v55, {SRD_DB}, 0 offen offset:{DB_EP*4} sc1\n    s_mov_b64 exec, -1')
        A.label(l)
        A.vm.append(('junk', set())); A.ev = {}
        self.addr_setup1(); self.setup_all()
        A.label('L_emain')
        ns = self.nstamp
        self.main(0, 'E')
        A.line('    s_branch L_tail')
        A.label('L_late')
        vm = [('flo', set())] * 16
        for t in range(o.npre_late): vm += [(f'x{t}', STG[t][i].regs()) for i in range(12)]
        A.reset_state(vm, [])
        self.nstamp = ns
        self.main(o.npre_late, 'L')
        A.label('L_tail')
        self.tail_phase()

    def prod_touch(self):
        A = self.A
        srd(A, SRD_Y, PWM, 294912); srd(A, SRD_X, PWK, 294912); srd(A, SRD_Z, PQ, 12288)
        A(salu('s_sub_u32', sT[0], sROLE, 9), salu('s_mul_i32', sT[1], sT[0], 165), valu('v_min_u32', T0, 164, vTID), valu('v_add_u32', T0, sT[1], T0),
          valu('v_mul_u32_u24', T1, 21846, T0), valu('v_lshrrev_b32', T1, 16, T1), valu('v_mul_u32_u24', T1, 384, T1), valu('v_lshl_add_u32', T0, T0, 7, T1),
          salu('s_and_b32', sT[2], sB, 1), salu('s_mul_i32', sT[1], sT[2], 384), salu('s_cmp_eq_u32', sW, 3))
        l = self.lab('pt'); l2 = self.lab('pt')
        A.line(f'    s_cbranch_scc1 {l}')
        A.line(f'    buffer_load_dword v156, {T0}, {SRD_Y}, {sT[1]} offen')
        A.line(f'    s_branch {l2}')
        A.label(l)
        A(salu('s_mul_i32', sT[1], sP0, 73728), salu('s_mul_i32', sT[2], sT[2], 36864), salu('s_add_u32', sT[1], sT[1], sT[2]),
          salu('s_mul_i32', sT[2], sT[0], 42 * 128), salu('s_add_u32', sT[1], sT[1], sT[2]), salu('s_mul_i32', sT[2], sT[0], 14 * 128),
          valu('v_min_u32', T0, 41, vL), valu('v_lshlrev_b32', T0, 7, T0), valu('v_min_u32', T1, 13, vL), valu('v_lshlrev_b32', T1, 7, T1))
        A.line(f'    buffer_load_dword v156, {T0}, {SRD_X}, {sT[1]} offen')
        A.line(f'    buffer_load_dword v155, {T1}, {SRD_Z}, {sT[2]} offen')
        A.label(l2)
        A.vm.append(('junk', v(156).regs())); A.vm.append(('junk', v(155).regs())); A.ev = {}

    def signal(self, sdw):
        A = self.A
        A(valu('v_mov_b32', T0, 1), valu('v_mov_b32', T1, sdw), valu('v_lshlrev_b32', T1, 2, T1), salu('s_mov_b64', 'exec', 1))
        A.line(f'    buffer_atomic_add {T0}, {T1}, {SRD_DB}, 0 offen sc1')
        A(salu('s_mov_b64', 'exec', -1))

    def prodA(self):
        A = self.A; o = self.o
        sH, sKS = sP0, sP1
        fs = (lambda: self.stamp(fine=True)) if o.fine == 10 else (lambda: None)
        fs()
        A(salu('s_and_b32', sT[0], sB, 1), salu('s_mul_i32', sKS, sT[0], 6), salu('s_add_u32', sKS, sKS, sROLE))
        srd(A, SRD_Y, PWM, 294912)
        MD = v(8)
        A(valu('v_lshrrev_b32', T0, 2, vL), valu('v_mul_u32_u24', T0, 768, T0), valu('v_and_b32', T1, 3, vL),
          valu('v_lshl_add_u32', MD, T1, 4, T0),
          salu('s_mul_i32', sSO, sW, 96 * 768), salu('s_lshl_b32', sT[0], sKS, 6), salu('s_add_u32', sSO, sSO, sT[0]),
          salu('s_mul_i32', sT[1], sW, 6144), salu('s_add_u32', sT[1], sT[1], 90112))
        for i in range(6):
            A(salu('s_add_u32', 'm0', sT[1], i * 1024), salu('s_add_u32', sSO2, sSO, i * 16 * 768), bload_lds(MD, SRD_Y, sSO2, 0, '', tag='pa'))
        srd(A, SRD_Z, PQ, 12288)
        A(salu('s_lshl_b32', sT[0], sW, 2), salu('s_lshr_b32', sT[0], 0x1890, sT[0]), salu('s_and_b32', sT[0], sT[0], 15),
          salu('s_lshl_b32', sT[0], sT[0], 4), salu('s_mul_i32', sT[2], sW, 3072), salu('s_add_u32', sT[1], sT[2], MISC))
        for r in range(4): A(salu('s_xor_b32', sK[r], sT[0], 16 * flat(r)))
        self.rows_dma(SRD_Z, [(r * 768, r * 768, sK[r]) for r in range(4)], sT[2], sT[1], '', 'pa')
        WK = [[v(232 + 12 * tau + 4 * u, 4) for u in range(3)] for tau in range(2)]
        KD = v(9)
        lk = self.lab('nk')
        A(salu('s_cmp_eq_u32', sW, 3)); A.line(f'    s_cbranch_scc1 {lk}')
        srd(A, SRD_X, PWK, 294912)
        A(salu('s_mul_i32', sSO, sH, 73728), salu('s_mul_i32', sT[0], sKS, 32 * 192), salu('s_add_u32', sSO, sSO, sT[0]),
          salu('s_lshl_b32', sT[0], sW, 11), salu('s_add_u32', sSO, sSO, sT[0]), salu('s_add_u32', 'm0', sT[0], R0 + 40960))
        for i in range(2): A(bload_lds(LIN, SRD_X, sSO, i * 1024, '', tag='pa'))
        A.label(lk)
        fs()
        srd(A, SRD_WL, PWL, 294912); srd(A, SRD_LO, PLO, 12582912); self.common_srds(); self.addr_setup1()
        QA, QB, QA2, QB2 = v(13), v(14), v(15), v(16)
        QF = [v(17 + i) for i in range(4)]
        self.wtr_setup(QA, QB); self.fa_setup(QF, MISC)
        A(salu('s_lshl_b32', sT[0], sW, 6), valu('v_add_u32', QA, sT[0], QA), valu('v_add_u32', QB, sT[0], QB),
          valu('v_add_u32', QA2, 65536, QA), valu('v_add_u32', QB2, 65536, QB))
        MA = v(21)
        A(valu('v_lshrrev_b32', T0, 4, vL), valu('v_lshlrev_b32', T0, 3, T0), valu('v_bfe_u32', T1, vL, 2, 2), valu('v_add_u32', T0, T0, T1),
          valu('v_lshlrev_b32', T0, 6, T0), valu('v_and_b32', T1, 3, vL), valu('v_lshl_add_u32', T0, T1, 4, T0),
          valu('v_add_u32', MA, 90112, T0))
        srd(A, SRD_X, PWQ, 294912)
        QD = [v(10 + i) for i in range(3)]
        self.wd_setup(192, QD, False)
        A(salu('s_mul_i32', sSO, sH, 73728), salu('s_mul_i32', sT[0], sW, 18432), salu('s_add_u32', sSO, sSO, sT[0]))
        for pc in range(3):
            A(salu('s_mul_i32', sT[0], sW, 3), salu('s_add_u32', sT[0], sT[0], pc), salu('s_mul_i32', sT[1], sT[0], 6144),
              salu('s_cmp_ge_u32', sT[0], 8), salu('s_cselect_b32', sT[2], 16384, 0), salu('s_add_u32', sT[1], sT[1], sT[2]))
            for aa in range(2):
                for b in range(3):
                    A(salu('s_add_u32', 'm0', sT[1], (3 * aa + b) * 1024), salu('s_add_u32', sSO2, sSO, (2 * pc + aa) * 3072),
                      bload_lds(QD[b], SRD_X, sSO2, 0, '', tag='pa'))
        fs()
        A.wait_vm()
        A.barrier()
        fs()
        D = [v(56, 4), v(60, 4)]; E = [v(64, 4), v(68, 4)]; QP = v(72, 4)
        QQ = [v(88 + 4 * i, 4) for i in range(12)]; TT = [[v(136 + 8 * i + 4 * j, 4) for j in range(2)] for i in range(12)]
        lm = self.lab('pam'); lj = self.lab('paj')
        A(salu('s_cmp_eq_u32', sW, 3)); A.line(f'    s_cbranch_scc1 {lm}')
        self.w_touch(255); self.flo_dma()
        def gemm(rd):
            def reads(ks):
                return [ds_read('ds_read_b128', QQ[ks], QF[ks & 3], (ks >> 2) * 256)] + rd(ks, TT[ks])
            for ks in range(3): A(reads(ks))
            for ks in range(12):
                for j in range(2): A(mfma16(D[j], TT[ks][j], QQ[ks], D[j] if ks else 0))
                if ks + 3 < 12: A(reads(ks + 3))
        def rdq(ks, T):
            L = []
            for j in range(2):
                ad = ((QA, QB) if ks < 8 else (QA2, QB2))[j]
                for r in range(2):
                    L.append(ds_read('ds_read_b64_tr_b16', T[j][2 * r:2 * r + 2], ad, (ks % 8) * 6144 + 32 * j + r * 768))
            return L
        gemm(rdq)
        for j in range(2):
            A(valu('v_cvt_pk_bf16_f32', QP[2 * j], D[j][0], D[j][1]), valu('v_cvt_pk_bf16_f32', QP[2 * j + 1], D[j][2], D[j][3]))
        A(salu('s_lshl_b32', sT[0], sW, 10), salu('s_add_u32', sT[0], sT[0], R0 + 36864), valu('v_add_u32', T0, sT[0], LIN),
          ds_write('ds_write_b128', T0, QP))
        A.barrier()
        A.line(f'    s_branch {lj}')
        A.reset_state([], []); A.label(lm)
        def rdm(ks, T):
            return [ds_read('ds_read_b64_tr_b16', T[j][2 * r:2 * r + 2], MA, ks * 2048 + r * 256 + 8 * j) for j in range(2) for r in range(2)]
        A(valu('v_bfe_u32', T0, vL, 2, 2), valu('v_lshlrev_b32', T0, 3, T0), valu('v_and_b32', T1, 3, vL), valu('v_add_u32', T0, T0, T1),
          valu('v_mul_u32_u24', T0, 192, T0), valu('v_lshrrev_b32', T1, 4, vL), valu('v_lshl_add_u32', T0, T1, 3, T0), valu('v_add_u32', KD, R0 + 40960, T0))
        gemm(rdm)
        for tau in range(2):
            for u in range(3):
                for e in range(2):
                    A(ds_read('ds_read_b64', WK[tau][u][2 * e:2 * e + 2], KD, tau * 768 + u * 64 + e * 32))
        A(salu('s_mov_b32', sK[1], S1), salu('s_mov_b32', sK[2], S2), valu('v_add_u32', T0, R0 + 36864, LIN),
          salu('s_mul_i32', sT[0], sH, 12), salu('s_add_u32', sT[0], sT[0], sKS), salu('s_lshl_b32', sT[0], sT[0], 10),
          salu('s_add_u32', sT[1], sH, DB_A))
        for tau in range(2):
            for i in range(4):
                A(valu('v_mul_f32', D[tau][i], sK[2], D[tau][i]))
        fs()
        A.barrier()
        fs()
        for u in range(3): A(ds_read('ds_read_b128', QQ[u], T0, u * 1024))
        for u in range(3):
            for tau in range(2): A(mfma16(E[tau], WK[tau][u], QQ[u], E[tau] if u else 0))
        for tau in range(2):
            for i in range(4):
                A(valu('v_fma_f32', D[tau][i], E[tau][i], sK[1], D[tau][i]))
        for tau in range(2):
            A(valu('v_cvt_pk_bf16_f32', QP[2 * tau], D[tau][0], D[tau][1]), valu('v_cvt_pk_bf16_f32', QP[2 * tau + 1], D[tau][2], D[tau][3]))
        A(bstore('buffer_store_dwordx4', QP, LIN, SRD_WS, sT[0], WS_A, 'sc1', tag='st'))
        fs()
        A.wait_vm()
        fs()
        self.signal(sT[1])
        self.flo_dma()
        A.label(lj)
        A.reset_state([], [])
        A.nop(2)
        self.setup_all()

    def prodV(self):
        A = self.A; o = self.o
        sH, sJ = sP0, sP1
        A(salu('s_and_b32', sT[0], sB, 1), salu('s_mul_i32', sJ, sT[0], 3), salu('s_add_u32', sJ, sJ, sROLE), salu('s_sub_u32', sJ, sJ, 6))
        srd(A, SRD_X, PWV, 294912)
        VD = v(8)
        A(valu('v_lshrrev_b32', T0, 1, vL), valu('v_mul_u32_u24', T0, 192, T0), valu('v_and_b32', T1, 1, vL),
          valu('v_lshl_add_u32', VD, T1, 4, T0),
          salu('s_mul_i32', sSO, sH, 73728), salu('s_mul_i32', sT[0], sW, 96 * 192), salu('s_add_u32', sSO, sSO, sT[0]),
          salu('s_lshl_b32', sT[0], sJ, 5), salu('s_add_u32', sSO, sSO, sT[0]), salu('s_mul_i32', sT[1], sW, 3072))
        for i in range(3):
            A(salu('s_add_u32', 'm0', sT[1], i * 1024), salu('s_add_u32', sSO2, sSO, i * 32 * 192), bload_lds(VD, SRD_X, sSO2, 0, '', tag='pv'))
        srd(A, SRD_WL, PWL, 294912); self.w_touch()
        srd(A, SRD_LO, PLO, 12582912); self.common_srds(); self.addr_setup1()
        VA = v(9)
        A.wait_vm()
        self.flo_dma()
        if o.pv_late: A(self.x_loads(0, 0))
        A(valu('v_lshrrev_b32', T0, 4, vL), valu('v_lshlrev_b32', T0, 3, T0), valu('v_bfe_u32', T1, vL, 2, 2), valu('v_add_u32', T0, T0, T1),
          valu('v_lshlrev_b32', T0, 5, T0), valu('v_and_b32', T1, 3, vL), valu('v_lshl_add_u32', T0, T1, 3, T0),
          salu('s_mul_i32', sT[1], sW, 3072), valu('v_add_u32', VA, sT[1], T0))
        ON = v(160, 4); FR = [v(164 + 4 * i, 4) for i in range(3)]; D = v(176, 4); CS = v(180, 4)
        for i in range(4): A(valu('v_mov_b32', ON[i], 0x3f803f80))
        for u in range(3):
            for r in range(2): A(ds_read('ds_read_b64_tr_b16', FR[u][2 * r:2 * r + 2], VA, u * 1024 + r * 128))
        for u in range(3): A(mfma16(D, ON, FR[u], D if u else 0))
        A(valu('v_and_b32', T0, 15, vL), valu('v_lshlrev_b32', T0, 4, T0), salu('s_lshl_b32', sT[0], sW, 2),
          valu('v_add_u32', T1, sT[0], T0), ds_write('ds_write_b32', T1, D[0], 16384))
        A.barrier()
        A(ds_read('ds_read_b128', CS, T0, 16384))
        A(valu('v_add_f32', CS[0], CS[0], CS[1]), valu('v_add_f32', CS[2], CS[2], CS[3]), valu('v_add_f32', CS[0], CS[0], CS[2]),
          valu('v_mul_f32', CS[0], 1.0 / 384, CS[0]))
        for u in range(3):
            for i in range(4):
                x = FR[u][i]
                A(valu('v_lshlrev_b32', T0, 16, x), valu('v_and_b32', T1, 0xffff0000, x), valu('v_sub_f32', T0, T0, CS[0]),
                  valu('v_sub_f32', T1, T1, CS[0]), valu('v_cvt_pk_bf16_f32', x, T0, T1))
        A(salu('s_mul_i32', sT[0], sH, 12), salu('s_mul_i32', sT[1], sW, 3), salu('s_add_u32', sT[0], sT[0], sT[1]),
          salu('s_mul_i32', sT[0], sT[0], 6), salu('s_add_u32', sT[0], sT[0], sJ), salu('s_lshl_b32', sT[0], sT[0], 10),
          salu('s_add_u32', sT[0], sT[0], WS_V))
        for u in range(3):
            A(bstore('buffer_store_dwordx4', FR[u], LIN, SRD_WS, sT[0], 0, 'sc1', tag='st'), salu('s_add_u32', sT[0], sT[0], 6144))
        A.wait_vm(); A.barrier()
        l = self.lab('pub')
        A(salu('s_cmp_lg_u32', sW, 0)); A.line(f'    s_cbranch_scc1 {l}')
        self.signal(DB_V)
        A.label(l)
        A.reset_state([], []); A.nop(2)
        self.setup_all()
        if o.pv_late:
            for t in range(1, o.npre_late): A(self.x_loads(t, t))

    def setup_all(self):
        A = self.A
        self.w_setup()
        self.fa_setup(FA, R0)
        A(valu('v_mov_b32', T0, 0x3f803f80), valu('v_lshlrev_b32', T1, 2, vTID), valu('v_min_u32', T1, 764, T1),
          ds_write('ds_write_b32', T1, T0, ONES), valu('v_mov_b32', T0, 0), valu('v_lshlrev_b32', T1, 2, vL),
          ds_write('ds_write_b32', T1, T0, FL))
        self.addr_setup2()

    def main(self, npre, cls):
        A = self.A; o = self.o
        self.cls = cls
        dbg = o.dump if o.dump else ''
        for ks in range(4): A(self.w_dma(ks))
        self.stamp()
        post = [t for t in range(npre, 4)]
        def reads(ks):
            b = ks & 1
            L = [ds_read('ds_read_b128', FF[b][0], FA[ks & 3], (ks >> 2) * 256)]
            wr = []
            for j in range(6):
                wr.append([ds_read('ds_read_b64_tr_b16', WF[b][j][2 * r:2 * r + 2], WT[j], (ks & 1) * 24576 + r * 3072) for r in range(2)])
            L += wr[0]
            for m in range(1, 4): L.append(ds_read('ds_read_b128', FF[b][m], FA[ks & 3], m * 12288 + (ks >> 2) * 256))
            for j in range(1, 6): L += wr[j]
            if ks & 1:
                for j in range(6): L.append(valu('v_xor_b32', WT[j], 0x10000, WT[j]))
            return L
        A.wait_vm('w0'); A.barrier()
        self.stamp()
        A(reads(0))
        aload = []
        for i in range(12):
            G = [salu('s_mul_i32', sSO, sW, 12288)] if i == 0 else ([salu('s_add_u32', sSO, sSO, 4096)] if i % 4 == 0 else [])
            aload.append(G + [bload('buffer_load_dwordx4', AFR[i], LIN, SRD_WS, sSO, (i % 4) * 1024, '', tag='A')])
        x0 = self.x_dma(0) if npre == 0 else []
        for ks in range(12):
            b = ks & 1
            M = [mfma16(LACC[m][j], WF[b][j], FF[b][m], LACC[m][j] if ks else 0) for j in range(6) for m in range(4)]
            fill = {}
            if ks < 11:
                def sync(A, ks=ks):
                    A.wait_vm(f'w{ks+1}', also_lg=True); A.barrier()
                fill[0] = [sync]
                spread(fill, reads(ks + 1), 0, 1)
            extra = []
            if ks <= 7: extra = self.w_dma(ks + 4)
            if ks == o.kflag:
                extra = extra + [[valu('v_lshlrev_b32', T0, 2, vL), bload('buffer_load_dword', FDB, T0, SRD_DB, 0, 0, 'sc1', tag='fl')]]
            if ks == 8: extra = [[self.check_flagA]] + aload[:6]
            if ks == 9: extra = aload[6:]
            if ks == 10: extra = x0[:6]
            if ks == 11: extra = x0[6:]
            spread_groups(fill, extra, 2, 4 if len(extra) <= 6 else 3)
            if o.fine == 11: self.stamp(fine=True)
            A(interleave(M, fill))
        self.stamp()
        if o.fine == 11: self.stamp(fine=True)
        A.barrier()
        LW = v(56); PK = [v(60 + 4 * i, 4) for i in range(4)]
        A(valu('v_and_b32', T0, 15, vL),
          valu('v_lshrrev_b32', T1, 2, T0), valu('v_lshrrev_b32', T2, 3, T0), valu('v_xor_b32', T2, T1, T2),
          valu('v_and_b32', T2, 1, T2), valu('v_lshlrev_b32', T2, 3, T2), valu('v_and_b32', T1, 1, T1), valu('v_or_b32', T2, T2, T1),
          valu('v_and_b32', T1, 1, T0), valu('v_lshl_or_b32', T2, T1, 2, T2), valu('v_and_b32', T1, 2, T0), valu('v_or_b32', T2, T2, T1),
          valu('v_mul_u32_u24', T0, 768, T0), valu('v_add_u32', LW, R0, T0),
          valu('v_bfe_u32', T0, vL, 4, 1), valu('v_lshlrev_b32', T0, 1, T0), valu('v_lshrrev_b32', T1, 5, vL), valu('v_add_u32', T0, T0, T1),
          salu('s_mul_i32', sT[0], sW, 12), valu('v_add_u32', T0, sT[0], T0))
        LWJ = [v(57), v(58), v(59)]
        for jp in range(3):
            A(valu('v_add_u32', T1, 4 * jp, T0), valu('v_xor_b32', T1, T1, T2), valu('v_lshl_add_u32', LWJ[jp], T1, 4, LW))
        n = 0
        for m in range(4):
            for jp in range(3):
                P = PK[n % 4]; n += 1
                x, y = LACC[m][2 * jp], LACC[m][2 * jp + 1]
                A(valu('v_cvt_pk_bf16_f32', P[0], x[0], x[1]), valu('v_cvt_pk_bf16_f32', P[1], x[2], x[3]),
                  valu('v_cvt_pk_bf16_f32', P[2], y[0], y[1]), valu('v_cvt_pk_bf16_f32', P[3], y[2], y[3]),
                  permswap('v_permlane16_swap_b32', P[0], P[2]), permswap('v_permlane16_swap_b32', P[1], P[3]),
                  ds_write('ds_write_b128', LWJ[jp], P, m * 12288))
        A.barrier()
        self.stamp()
        if dbg == 'lat':
            self.dump_lds(R0, 49152); return
        SA4 = CX
        A(salu('s_mul_i32', sT[0], sW, 12288))
        FO = [v(78 + i) for i in range(4)]; ONQ = v(82, 4)
        for j in range(4): A(valu('v_add_u32', FO[j], sT[0], FA[j]))
        for i in range(4): A(valu('v_mov_b32', ONQ[i], 0x3f803f80))
        rd = []; M = []
        nq = 0
        for ks in range(12):
            q = RING[nq % 8]; nq += 1
            rd.append((len(M), ds_read('ds_read_b128', q, FO[ks & 3], (ks >> 2) * 256)))
            M.append(mfma16(GA, q, q, GA if ks else 0)); M.append(mfma16(LSM, q, ONQ, LSM if ks else 0))
        for ks in range(12): M.append(mfma16(SA4, ONQ, AFR[ks], SA4 if ks else 0))
        for m in range(4):
            for ks in range(12):
                q = RING[nq % 8]; nq += 1
                rd.append((len(M), ds_read('ds_read_b128', q, FA[ks & 3], m * 12288 + (ks >> 2) * 256)))
                M.append(mfma16(SLO[m], q, AFR[ks], SLO[m] if ks else 0))
        fill = {}
        self.place_reads(fill, rd, M, 6)
        ex = [valu('v_lshrrev_b32', T0, 4, vL), valu('v_mul_u32_u24', T0, 80, T0)]
        for t in range(4):
            ex += [valu('v_add_u32', T1, 4 * t, T0), ds_bperm(LSQ[t], T1, GA[t])]
        spread(fill, ex, 30, 1)
        fill.setdefault(46, []).append(valu('v_mov_b32', SUMA, SA4[0]))
        wr = []
        for t in range(npre):
            wr += [ds_write('ds_write_b128', XW, STG[t][i], i * 1024) for i in range(12)] + [valu('v_xor_b32', XW, 0x10000, XW)]
        if npre <= 1: spread_groups(fill, self.x_dma(1), o.x1_slot if npre == 0 else 3, 4)
        spread(fill, wr, 1, 1, 3)
        A(interleave(M, fill))
        if dbg == 'slo':
            self.dump_regs([r for q in SLO for r in (q[0], q[1], q[2], q[3])] + [LSQ[i] for i in range(4)] + [LSM[i] for i in range(4)] + [SUMA]); return
        self.stamp()
        A(valu('v_mov_b32', LSUM, 0), valu('v_mov_b32', MREF, 0), valu('v_mov_b32', FLA, FL))
        A.wait_vm('x0'); A.wait_lg()
        SM, sfill, ex = self.stats(0, RING)
        A(interleave(SM, sfill)); A(ex)
        A.barrier()
        self.stamp()
        self.wvq = SPARE + STG[2] + STG[3] + STG[0] + STG[1] + AFR + SLO + SACC
        wv = 0
        plan = o.plan_e if cls == 'E' else o.plan_l
        for t in range(4):
            ns_, nu_ = plan[t]
            sl_ = self.x_dma(t + 1) if t in (1, 2) else []
            chk = wv == 0 and ns_ + nu_ > 0
            hi = min(52, wv + ns_); sl_ += self.wv_loads(wv, hi); wv = hi
            hi = min(52 if t < 3 else 72, wv + nu_); ul = self.wv_loads(wv, hi); wv = hi
            if chk: self.check_flagV(A)
            self.step(t, ul, sl_)
            if dbg == f'step{t}': return
        self.wv_next = wv
        self.epilogue()

    def wv_loads(self, i0, i1):
        L = []
        for i in range(i0, i1):
            G = [salu('s_add_u32', sSO2, sP0, (i // 4) * 4096)] if (i == i0 or i % 4 == 0) else []
            G.append(bload('buffer_load_dwordx4', self.wvq[i], LIN, SRD_WS, sSO2, (i % 4) * 1024, '', tag='wv'))
            L.append(G)
        return L

    def place_reads(self, fill, rd, M, ahead):
        for k, (m, ins) in enumerate(rd):
            if k < ahead: slot = -1
            else: slot = rd[k - ahead][0]
            fill.setdefault(slot, []).append(ins)

    def check_flagA(self, A):
        lr = self.lab('fa'); ls = self.lab('fs')
        A.label(lr)
        A(valu('v_cmp_le_u32', 'vcc', 12, FDB), salu('s_lshr_b64', sM, 'vcc', 32), readlane(sEP, FDB, DB_EP),
          readlane(sVF, FDB, DB_V),
          salu('s_and_b32', sM[0], sM[0], 15), salu('s_cmp_eq_u32', sM[0], 15), salu('s_cselect_b32', sM[0], sEP, 0),
          salu('s_cmp_eq_u32', sM[0], 0))
        A.line(f'    s_cbranch_scc1 {ls}')
        lb = self.lab('fb'); A.label(lb)
        B = Asm(); B.label(ls)
        B.line('    s_sleep 2')
        B(valu('v_lshlrev_b32', T0, 2, vL), bload('buffer_load_dword', FDB, T0, SRD_DB, 0, 0, 'sc1'))
        B.wait_vm()
        self.spin_guard(B, lr)
        B.line(f'    s_branch {lb}')
        self.tail.append(B.text())
        A(salu('s_mul_i32', sTAG, sEP, 0x9E3779B1))
        A.line('    s_getreg_b32 s46, hwreg(HW_REG_XCC_ID)'); A.clock += 1
        A(salu('s_and_b32', sXCC, sXCC, 15))
        if self.o.fakegrp:
            self.fake_group(A)
        A(salu('s_and_b32', sT[0], sTAG, 0xfffffff0), salu('s_or_b32', sT[0], sT[0], sXCC),
          valu('v_mov_b32', T0, sT[0]), salu('s_lshl_b32', sT[1], sB, 2), salu('s_add_u32', sT[1], sT[1], WS_TAB), valu('v_mov_b32', T1, 0),
          salu('s_mov_b64', 'exec', 1))
        A(bstore('buffer_store_dword', T0, T1, SRD_WS, sT[1], 0, 'sc1', tag='tab'))
        A(salu('s_mov_b64', 'exec', -1))

    def check_flagV(self, A):
        ls = self.lab('fv'); lb = self.lab('fvb')
        A(salu('s_cmp_lt_u32', sVF, 24)); A.line(f'    s_cbranch_scc1 {ls}')
        A.label(lb)
        B = Asm(); B.label(ls); B.nop(8)
        B(valu('v_mov_b32', T2, 4 * DB_V), bload('buffer_load_dword', T2, T2, SRD_DB, 0, 0, 'sc1'), readfirstlane(sVF, T2),
          salu('s_add_u32', sCNT, sCNT, 1), salu('s_cmp_ge_u32', sCNT, 400000))
        B.line(f'    s_cbranch_scc1 {lb}')
        B(salu('s_cmp_lt_u32', sVF, 24)); B.line(f'    s_cbranch_scc1 {ls}')
        B.line(f'    s_branch {lb}')
        self.tail.append(B.text())

    def fake_group(self, A):
        A(salu('s_lshr_b32', sT[0], sB, 3), salu('s_cmp_lt_u32', sT[0], self.o.fakegrp), salu('s_cselect_b32', sT[0], 8, 0),
          salu('s_and_b32', sXCC, sXCC, 7), salu('s_add_u32', sXCC, sXCC, sT[0]))

    def addr_setup2(self):
        A = self.A
        G = v(56); Q = v(57); F = v(58)
        A(valu('v_lshrrev_b32', G, 4, vL), valu('v_and_b32', Q, 15, vL))
        A(valu('v_and_b32', T0, 3, Q), valu('v_lshlrev_b32', T0, 2, T0), valu('v_lshrrev_b32', T1, 1, Q), valu('v_and_b32', T1, 2, T1),
          valu('v_or_b32', T0, T0, T1), valu('v_xor_b32', T0, T0, G), valu('v_lshlrev_b32', T0, 4, T0), valu('v_mul_u32_u24', T1, 768, Q),
          salu('s_mul_i32', sT[0], sW, 12288))
        for j in range(4):
            A(valu('v_xor_b32', T2, 64 * j, T0), valu('v_add_u32', XA[j], T1, T2), valu('v_add_u32', XO[j], sT[0], XA[j]))
        A(valu('v_add_u32', XW, sT[0], LIN), salu('s_mov_b32', sXB, sT[0]))
        HH = v(59); JJ = v(60); II = v(61); HB = v(62)
        A(valu('v_lshrrev_b32', HH, 5, vL), valu('v_and_b32', T0, 1, G), valu('v_lshlrev_b32', T0, 1, T0), valu('v_and_b32', T1, 1, vL),
          valu('v_or_b32', JJ, T0, T1), valu('v_lshrrev_b32', II, 2, Q), valu('v_and_b32', T0, 2, vL), valu('v_lshlrev_b32', HB, 2, T0))
        for ct in range(3):
            A(salu('s_mul_i32', sT[0], sW, 3), salu('s_add_u32', sT[0], sT[0], ct), salu('s_lshr_b32', sT[1], sT[0], 2),
              salu('s_lshl_b32', sT[1], sT[1], 8), salu('s_and_b32', sT[0], sT[0], 3), salu('s_lshl_b32', sT[0], sT[0], 2))
            for r in range(2):
                A(valu('v_lshlrev_b32', T0, 2, II), valu('v_xor_b32', T0, T0, JJ), valu('v_xor_b32', T0, sT[0], T0))
                if r: A(valu('v_xor_b32', T0, 2, T0))
                A(valu('v_lshl_add_u32', T0, T0, 4, HB), valu('v_add_u32', T0, sT[1], T0),
                  valu('v_lshl_add_u32', T1, HH, 3, II), valu('v_add_u32', T1, 4 * r, T1), valu('v_mul_u32_u24', T1, 768, T1),
                  valu('v_add_u32', XT[2 * ct + r], T0, T1))
                A(valu('v_lshrrev_b32', T0, 1, II), valu('v_and_b32', T1, 1, II),
                  valu('v_lshl_add_u32', T2, T0, 2, T1), valu('v_add_u32', T2, 8 * r, T2), valu('v_lshl_add_u32', T2, HH, 4, T2),
                  valu('v_mul_u32_u24', T2, 768, T2),
                  valu('v_lshl_or_b32', T1, T1, 2, T0))
                A(valu('v_xor_b32', T0, r, T0), valu('v_lshl_or_b32', T1, T0, 3, T1),
                  valu('v_xor_b32', T1, T1, JJ), valu('v_xor_b32', T1, sT[0], T1), valu('v_lshl_add_u32', T1, T1, 4, HB),
                  valu('v_add3_u32', T1, T1, T2, sT[1]), valu('v_add_u32', LT[2 * ct + r], R0, T1))
        A(salu('s_lshl_b32', sT[0], sW, 11), salu('s_add_u32', sT[0], sT[0], PH),
          valu('v_lshrrev_b32', T0, 1, Q), valu('v_lshrrev_b32', T1, 1, G), valu('v_xor_b32', T0, T0, T1), valu('v_lshlrev_b32', T0, 4, T0),
          valu('v_and_b32', T1, 1, G), valu('v_lshl_add_u32', T0, T1, 3, T0), valu('v_lshlrev_b32', T1, 7, Q), valu('v_add_u32', T1, sT[0], T1))
        for g in range(4): A(valu('v_xor_b32', T2, 32 * g, T0), valu('v_add_u32', PHW[g], T1, T2))
        A(valu('v_bfe_u32', T0, vL, 1, 3), valu('v_xor_b32', T0, T0, HH), valu('v_lshlrev_b32', T0, 4, T0),
          valu('v_and_b32', T1, 31, vL), valu('v_lshlrev_b32', T1, 7, T1), valu('v_add_u32', T1, PH, T1))
        for g in range(4): A(valu('v_xor_b32', T2, 32 * g, T0), valu('v_add_u32', PHR[g], T1, T2))
        A(salu('s_lshl_b32', sT[0], sW, 10), salu('s_add_u32', sT[0], sT[0], PL), valu('v_lshlrev_b32', T0, 6, Q), valu('v_add_u32', T0, sT[0], T0),
          valu('v_lshl_add_u32', T0, II, 4, T0), valu('v_lshl_add_u32', PLW, G, 2, T0))
        A(valu('v_bfe_u32', T0, vL, 2, 2), valu('v_xor_b32', T0, T0, HH), valu('v_lshlrev_b32', T0, 4, T0),
          valu('v_and_b32', T1, 31, vL), valu('v_lshlrev_b32', T1, 6, T1), valu('v_add_u32', T1, PL, T1),
          valu('v_add_u32', PLR[0], T1, T0), valu('v_xor_b32', T0, 32, T0), valu('v_add_u32', PLR[1], T1, T0))
        A(valu('v_lshlrev_b32', T0, 4, G), valu('v_add_u32', RRD, RR, T0),
          salu('s_lshl_b32', sT[0], sW, 6), salu('s_add_u32', sT[0], sT[0], RR), valu('v_lshlrev_b32', T0, 2, Q), valu('v_add_u32', T0, sT[0], T0),
          valu('v_lshlrev_b32', T1, 2, vL), valu('v_add_u32', T1, DUM, T1), valu('v_cmp_eq_u32', 'vcc', II, G),
          valu('v_cndmask_b32', RWR, T1, T0))
        A(valu('v_lshlrev_b32', T0, 2, II), salu('s_mov_b32', sT[1], 0x1890), valu('v_lshrrev_b32', T0, T0, sT[1]), valu('v_and_b32', T0, 15, T0),
          valu('v_xor_b32', T0, T0, G), valu('v_lshlrev_b32', T0, 4, T0),
          valu('v_mul_u32_u24', T1, 3072, II), salu('s_mul_i32', sT[0], sW, 12288), salu('s_add_u32', sT[0], sT[0], R0),
          valu('v_add_u32', T1, sT[0], T1), valu('v_and_b32', T2, 3, Q), valu('v_cmp_eq_u32', 'vcc', 0, T2),
          valu('v_mov_b32', F, 768), valu('v_cndmask_b32', CD, 0, F))
        for j in range(4):
            A(valu('v_xor_b32', T2, 64 * j, T0), valu('v_add_u32', T2, T1, T2), valu('v_mov_b32', F, ONES + 64 * (j ^ 1) + 32),
              valu('v_cndmask_b32', CA[j], F, T2))
        A(salu('s_mov_b32', sK[4], 0x22222222), salu('s_mov_b32', sK[5], 0x22222222), salu('s_mov_b32', sK[6], 0xcccccccc),
          salu('s_mov_b32', sK[7], 0xcccccccc), salu('s_mov_b32', sK[8], 0x88888888), salu('s_mov_b32', sK[9], 0x88888888),
          salu('s_mov_b32', sK[1], 1.0 / 384), salu('s_mov_b32', sK[2], 1e-5), salu('s_mov_b32', sK[3], THR),
          salu('s_mul_i32', sP0, sW, 73728), salu('s_add_u32', sP0, sP0, WS_V))

    def softmax_group(self, t, g, rb, first=False, raw=False):
        r, m = rb
        S = SACC[g]; slo = SLO[g][t]
        L = []
        for i in range(4): L.append(valu('v_fma_f32', m[i], -m[i], SUMA, slo))
        for i in range(4): L.append(valu('v_add_f32', m[i], m[i], S[i]))
        if raw or first:
            for i in range(4): L.append(valu('v_mul_f32', m[i], m[i], r[i]))
            if raw: return L
            L += [valu('v_max3_f32', MREF, m[0], m[1], m[2]), valu('v_max_f32', MREF, MREF, m[3]),
                  lambda A: self.allreduce_g(A, 'v_max_f32', MREF, T2)]
            for i in range(4): L.append(valu('v_sub_f32', m[i], m[i], MREF))
        else:
            for i in range(4): L.append(valu('v_fma_f32', m[i], m[i], r[i], -MREF))
        L += self.softmax_fin(t, g, rb, track=True)
        return L

    def softmax_fin(self, t, g, rb, track):
        r, m = rb
        L = []
        if track:
            if g == 0: L += [valu('v_max3_f32', EMAX, m[0], m[1], m[2]), valu('v_max_f32', EMAX, EMAX, m[3])]
            else: L += [valu('v_max3_f32', EMAX, m[0], m[1], EMAX), valu('v_max3_f32', EMAX, m[2], m[3], EMAX)]
        for i in range(4): L.append(valu('v_exp_f32', m[i], m[i]))
        for i in range(4): L.append(valu('v_mul_f32', r[i], r[i], m[i]))
        L += [valu('v_add_f32', m[0], m[0], m[1]), valu('v_add_f32', m[2], m[2], m[3])]
        if g == 0: L.append(valu('v_add_f32', LST, m[0], m[2]))
        else: L += [valu('v_add_f32', m[0], m[0], m[2]), valu('v_add_f32', LST, LST, m[0])]
        L += [valu('v_cvt_pk_bf16_f32', m[2], r[0], r[1]), valu('v_cvt_pk_bf16_f32', m[3], r[2], r[3]),
              valu('v_add_f32', r[0], r[0], r[1]), valu('v_add_f32', r[2], r[2], r[3]), valu('v_add_f32', POOL[g][t & 1], r[0], r[2]),
              ds_write('ds_write_b64', PHW[g], m[2:4], 0)]
        return L

    def softmax_pk(self, t, g, rb):
        r, m = rb
        S = SACC[g]
        def pk(op, d, srcs, mods=''):
            return Ins(f'{op} {d}, ' + ', '.join(str(x) for x in srcs) + (' ' + mods if mods else ''), 'valu', regset(srcs), regset([d]))
        def bc(x):
            return (R('v', x.i & ~1, 2), x.i & 1)
        sa, sas = bc(SUMA); sl, sls = bc(SLO[g][t]); mr, mrs = bc(MREF)
        L = []
        for h in range(2):
            L.append(pk('v_pk_fma_f32', m[2*h:2*h+2], [m[2*h:2*h+2], sa, sl], f'op_sel:[0,{sas},{sls}] op_sel_hi:[1,{sas},{sls}] neg_lo:[1,0,0] neg_hi:[1,0,0]'))
        for h in range(2): L.append(pk('v_pk_add_f32', m[2*h:2*h+2], [m[2*h:2*h+2], S[2*h:2*h+2]]))
        for h in range(2):
            L.append(pk('v_pk_fma_f32', m[2*h:2*h+2], [m[2*h:2*h+2], r[2*h:2*h+2], mr], f'op_sel:[0,0,{mrs}] op_sel_hi:[1,1,{mrs}] neg_lo:[0,0,1] neg_hi:[0,0,1]'))
        L += [valu('v_max3_f32', EMAX, m[0], m[1], EMAX), valu('v_max3_f32', EMAX, m[2], m[3], EMAX)]
        for i in range(4): L.append(valu('v_exp_f32', m[i], m[i]))
        for h in range(2): L.append(pk('v_pk_mul_f32', r[2*h:2*h+2], [r[2*h:2*h+2], m[2*h:2*h+2]]))
        L += [pk('v_pk_add_f32', m[0:2], [m[0:2], m[2:4]]),
              valu('v_cvt_pk_bf16_f32', m[2], r[0], r[1]), valu('v_cvt_pk_bf16_f32', m[3], r[2], r[3]),
              ds_write('ds_write_b64', PHW[g], m[2:4], 0),
              pk('v_pk_add_f32', r[0:2], [r[0:2], r[2:4]]), valu('v_add_f32', m[0], m[0], m[1]),
              valu('v_add_f32', POOL[g][t & 1], r[0], r[1]), valu('v_add_f32', LST, LST, m[0])]
        return L

    def pool_write(self):
        L = []
        for g in range(4):
            L += [valu('v_cvt_pk_bf16_f32', T0, POOL[g][0], POOL[g][1]), valu('v_xor_b32', T1, 16 * g, PLW) if g else valu('v_mov_b32', T1, PLW),
                  ds_write('ds_write_b32', T1, T0, 0)]
        return L

    def r_reads(self, g, rb):
        return [ds_read('ds_read_b128', rb[0], RRD, 64 * g), ds_read('ds_read_b128', rb[1], RRD, 64 * g + 256)]

    def rare_softmax(self, t, lab, back):
        B = Asm(); B.label(lab)
        B.line('    s_waitcnt lgkmcnt(0)'); B.nop(16)
        for g in range(4):
            B(self.r_reads(g, RB[0])); B(self.softmax_group(t, g, RB[0], raw=True))
            m = RB[0][1]
            if g == 0: B(valu('v_max3_f32', EMAX, m[0], m[1], m[2]), valu('v_max_f32', EMAX, EMAX, m[3]))
            else: B(valu('v_max3_f32', EMAX, m[0], m[1], EMAX), valu('v_max3_f32', EMAX, m[2], m[3], EMAX))
        self.allreduce_g(B, 'v_max_f32', EMAX, T2)
        B(valu('v_max_f32', EMAX, EMAX, MREF), valu('v_sub_f32', T0, MREF, EMAX), valu('v_exp_f32', T0, T0), valu('v_mov_b32', MREF, EMAX),
          valu('v_mul_f32', LSUM, LSUM, T0))
        if t & 1:
            for g in range(4): B(valu('v_mul_f32', POOL[g][0], POOL[g][0], T0))
        B(valu('v_and_b32', T1, 15, vL), valu('v_lshlrev_b32', T1, 2, T1), salu('s_lshl_b32', sT[0], sW, 6), valu('v_add_u32', T1, sT[0], T1),
          ds_write('ds_write_b32', T1, T0, AL), valu('v_mov_b32', T0, t + 1), salu('s_lshl_b32', sT[0], sW, 2), valu('v_mov_b32', T1, sT[0]),
          ds_write('ds_write_b32', T1, T0, FL))
        for g in range(4):
            B(self.r_reads(g, RB[0])); B(self.softmax_group(t, g, RB[0], raw=True))
            m = RB[0][1]
            for i in range(4): B(valu('v_sub_f32', m[i], m[i], MREF))
            B(self.softmax_fin(t, g, RB[0], track=False))
        B.wait_lg(); B.nop(4)
        B.line(f'    s_branch {back}')
        self.tail.append(B.text())

    def rare_rescale(self, t, lab, back):
        B = Asm(); B.label(lab)
        B.line('    s_waitcnt lgkmcnt(0)'); B.nop(16)
        Y0, Y1 = RB[0][1][0], RB[0][1][1]
        B(valu('v_and_b32', Y0, 31, vL), valu('v_lshlrev_b32', Y0, 2, Y0), valu('v_bfe_u32', Y1, vL, 4, 1), valu('v_lshlrev_b32', Y1, 2, Y1))
        for nu in range(2):
            B(ds_read('ds_read_b32', T2, Y0, AL + 128 * nu), ds_read('ds_read_b32', EMAX, Y1, FL + 8 * nu),
              valu('v_cmp_eq_u32', 'vcc', t + 1, EMAX), valu('v_cndmask_b32', T2, 1.0, T2))
            for ct in range(3):
                for i in range(16): B(valu('v_mul_f32', UACC[ct][nu][i], UACC[ct][nu][i], T2))
        B.nop(4)
        B.line(f'    s_branch {back}')
        self.tail.append(B.text())

    def stats(self, t, ring):
        rd = []; M = []; nq = 0
        for ks in range(12):
            x = ring[nq % 8]; nq += 1; c = ring[nq % 8]; nq += 1
            rd.append((len(M), ds_read('ds_read_b128', x, XO[ks & 3], (ks >> 2) * 256)))
            M.append(mfma16(GA, x, x, GA if ks else 0))
            rd.append((len(M), ds_read('ds_read_b128', c, CA[ks & 3], (ks >> 2) * 256)))
            M.append(mfma16(CX, c, x, CX if ks else 0))
        fill = {}
        self.place_reads(fill, rd, M, 5)
        Y = EMAX
        ex = [valu('v_cndmask_b32', T0, GA[0], GA[1], s(92, 2)), valu('v_cndmask_b32', T1, GA[2], GA[3], s(96, 2)),
              valu('v_add_f32', Y, CX[1], LSM[t]),
              valu('v_cndmask_b32', T0, T0, T1, s(94, 2)), valu('v_mul_f32', Y, sK[1], Y),
              valu('v_fma_f32', T0, CX[0], 2.0, T0), valu('v_add_f32', T0, T0, LSQ[t]),
              valu('v_mul_f32', T1, Y, Y), valu('v_fma_f32', T0, T0, sK[1], -T1), valu('v_max_f32', T0, 0, T0),
              valu('v_add_f32', T0, sK[2], T0), valu('v_rsq_f32', T0, T0),
              ds_write('ds_write_b32', RWR, Y, 256), ds_write('ds_write_b32', RWR, T0, 0)]
        return M, fill, ex

    def step(self, t, loads, sloads):
        A = self.A; o = self.o
        dbg = o.dump or ''
        fs = (lambda: self.stamp(fine=True)) if o.fine == t else (lambda: None)
        rd = []; M = []; nq = 0
        for g in range(4):
            for ks in range(12):
                x = RING[nq % 8]; nq += 1
                rd.append((len(M), ds_read('ds_read_b128', x, XA[ks & 3], g * 12288 + (ks >> 2) * 256)))
                M.append(mfma16(SACC[g], x, AFR[ks], SACC[g] if ks else 0))
        fill = {}
        self.place_reads(fill, rd, M, 6)
        fill[-1] += self.r_reads(0, RB[0]) + self.r_reads(1, RB[1])
        for g_ in sloads[:2]: fill[-1].extend(g_)
        spread_groups(fill, sloads[2:], 2, 4)
        for g in range(3):
            sm = self.softmax_group(t, g, RB[g & 1], first=(t == 0 and g == 0))
            if g < 2: sm += self.r_reads(g + 2, RB[g & 1])
            spread(fill, sm[:4], 12 * g + 9, 2)
            rest = sm[4:]
            per = -(-len(rest) // 10)
            spread(fill, rest, 12 * g + 13, per)
        fs()
        A(interleave(M, fill))
        fs()
        A(self.softmax_pk(t, 3, RB[1]))
        fs()
        lr = self.lab('rare'); lb = self.lab('back')
        A(valu('v_cmp_lt_f32', 'vcc', sK[3], EMAX))
        XTB = [[RING[3 * b + ct] for ct in range(3)] for b in range(2)]
        PB = [[RING[6], RING[7]], [RB[1][0], RB[1][1]]]
        ksteps = [('h', g) for g in range(4)] + ([('l', u) for u in range(2)] if t & 1 else [])
        def xreads(k, b):
            kind, g = ksteps[k]
            ad, off = (XT, g * 12288) if kind == 'h' else (LT, g * 24576)
            return [ds_read('ds_read_b64_tr_b16', XTB[b][ct][2 * r:2 * r + 2], ad[2 * ct + r], off) for ct in range(3) for r in range(2)]
        def preads(k, b):
            kind, g = ksteps[k]
            if kind == 'h': return [ds_read('ds_read_b128', PB[b][nu], PHR[g], nu * 4096) for nu in range(2)]
            return [ds_read('ds_read_b128', PB[b][nu], PLR[g], nu * 2048) for nu in range(2)]
        A(xreads(0, 0))
        A.line(f'    s_cbranch_vccnz {lr}')
        A.label(lb)
        self.rare_softmax(t, lr, lb)
        A(valu('v_add_f32', LSUM, LSUM, LST))
        if t & 1: A(self.pool_write())
        fs()
        A.barrier()
        fs()
        if dbg == f'step{t}':
            self.dump_lds(MISC, 16384); return
        upd = []
        if t < 3:
            for r in XA + XO: upd.append(valu('v_xor_b32', r, 0x10000, r))
            ck = [64, 96, 64][t]
            for r in CA: upd += [valu('v_xor_b32', r, ck, r), valu('v_add_u32', r, r, CD)]
        else: upd = self.epi_addr()
        FQ = RB[0][0]
        if t > 0: A(ds_read('ds_read_b128', FQ, FLA, 0))
        A(preads(0, 0))
        A(upd[:12]); upd = upd[12:]
        if t > 0:
            lr = self.lab('resc'); lb = self.lab('rback')
            A(valu('v_max3_u32', T2, FQ[0], FQ[1], FQ[2]), valu('v_max_u32', T2, T2, FQ[3]), readfirstlane(sT[1], T2),
              salu('s_cmp_eq_u32', sT[1], t + 1))
            A.line(f'    s_cbranch_scc1 {lr}')
            A.label(lb)
            self.rare_rescale(t, lr, lb)
        fs()
        M = []; fill = {}
        nk = len(ksteps)
        for k in range(nk):
            b = k & 1
            base = len(M)
            order = [(ct, nu) for ct in range(3) for nu in range(2)]
            for ct, nu in order:
                M.append(mfma32(UACC[ct][nu], XTB[b][ct], PB[b][nu], UACC[ct][nu] if (t or k) else 0))
            if k + 1 < nk:
                rr = preads(k + 1, b ^ 1) + xreads(k + 1, b ^ 1)
                spread(fill, rr, base, 2)
        n = len(M)
        spread(fill, upd, 4, 2)
        spread_groups(fill, loads, 1, 2)
        if t == 1: fill.setdefault(n - 10, []).append(self.wo_touch)
        if t == o.tab_step: fill.setdefault(3, []).append(self.table_load)
        if t < 3:
            spread(fill, [valu('v_xor_b32', r, 0x10000, r) for r in XT], 16, 3)
            last = {k - (n - 6): fill.pop(k) for k in list(fill) if k >= n - 6}
            A(interleave(M[:n - 6], fill))
            A.wait_vm(f'x{t+1}')
            SM, sfill, ex = self.stats(t + 1, [RING[0], RING[1], RING[2], RING[6], RING[7], SACC[0], SACC[1], SACC[2]])
            if t == 1:
                u2 = []
                for r in LT: u2 += [valu('v_xor_b32', r, 32, r), valu('v_add_u32', r, 1536, r)]
                spread(sfill, u2, 2, 1)
            A(interleave(SM, sfill))
            spread(last, ex, 1, 4)
            A(interleave(M[n - 6:], last))
        else:
            A(interleave(M, fill))
        fs()
        if t == o.tab_step: self.table_use()
        fs()
        if t < 3: A.barrier()
        fs()
        if t == o.tab_step: self.table_use2()
        self.stamp()

    def wo_touch(self, A):
        srd(A, SRD_X, PWO, 294912)
        A(valu('v_min_u32', T0, 17, vL), salu('s_mul_i32', sT[0], sW, 18), valu('v_add_u32', T0, sT[0], T0), valu('v_lshlrev_b32', T0, 7, T0),
          salu('s_lshr_b32', sT[0], sB, 3), salu('s_mul_i32', sT[0], sT[0], 9216),
          bload('buffer_load_dword', SLO[0][0], T0, SRD_X, sT[0], 0, tag='junk'))

    def table_load(self, A):
        TB = RB[0][1]
        A(valu('v_lshlrev_b32', TB[2], 2, vTID), salu('s_mov_b32', sSO, WS_TAB),
          bload('buffer_load_dword', TB[0], TB[2], SRD_WS, sSO, 0, 'sc1', tag='tb'))

    def table_use(self):
        A = self.A
        TB = RB[0][1]
        lr = self.lab('tb'); ls = self.lab('tbs'); lb = self.lab('tbb')
        A.label(lr)
        A(valu('v_xor_b32', T0, sTAG, TB[0]), valu('v_cmp_lt_u32', 'vcc', 15, T0), salu('s_cmp_lg_u64', 'vcc', 0))
        A.line(f'    s_cbranch_scc1 {ls}')
        A.label(lb)
        B = Asm(); B.label(ls); B.line('    s_sleep 2')
        B(salu('s_mov_b32', sSO, WS_TAB), bload('buffer_load_dword', TB[0], TB[2], SRD_WS, sSO, 0, 'sc1'))
        B.wait_vm(); self.spin_guard(B, lr); B.line(f'    s_branch {lb}')
        self.tail.append(B.text())
        A(valu('v_and_b32', TB[0], 15, TB[0]), valu('v_cmp_eq_u32', sM2, sXCC, TB[0]),
          valu('v_mov_b32', T1, 1), valu('v_lshlrev_b32', T1, TB[0], T1))
        for sh in ('row_ror:1', 'row_ror:2', 'row_ror:4', 'row_ror:8'):
            A(valu('v_or_b32_dpp', T1, T1, T1, mods=sh))
        self.allreduce_g(A, 'v_or_b32', T1, T2)
        A(salu('s_bcnt1_i32_b64', sT[0], sM2), valu('v_mov_b32', T0, sT[0]), salu('s_lshl_b32', sT[1], sW, 3), valu('v_mov_b32', T2, sT[1]))
        A(valu('v_mov_b32', TB[2], T0), valu('v_mov_b32', TB[3], T1), ds_write('ds_write_b64', T2, TB[2:4], CNT))

    def table_use2(self):
        A = self.A
        Q0 = RB[0][0]; Q1 = RB[0][1]
        A(valu('v_mov_b32', T0, 0), ds_read('ds_read_b128', Q0, T0, CNT), ds_read('ds_read_b128', Q1, T0, CNT + 16))
        A(readfirstlane(sT[0], Q0[0]), readfirstlane(sT[1], Q0[2]), readfirstlane(sT[2], Q1[0]), readfirstlane(sT[3], Q1[2]),
          valu('v_or3_b32', T1, Q0[1], Q0[3], Q1[1]), valu('v_or_b32', T1, T1, Q1[3]), readfirstlane(sGM, T1))
        A(salu('s_add_u32', sT[1], sT[1], sT[0]), salu('s_add_u32', sT[2], sT[2], sT[1]), salu('s_add_u32', sN, sT[3], sT[2]),
          salu('s_cmp_eq_u32', sW, 1), salu('s_cselect_b32', sP1, sT[0], 0), salu('s_cmp_eq_u32', sW, 2), salu('s_cselect_b32', sP1, sT[1], sP1),
          salu('s_cmp_eq_u32', sW, 3), salu('s_cselect_b32', sP1, sT[2], sP1))
        A(Ins(f'v_mbcnt_lo_u32_b32 {T0}, {sM2[0]}, 0', 'valu', regset([sM2]), regset([T0])),
          Ins(f'v_mbcnt_hi_u32_b32 {T0}, {sM2[1]}, {T0}', 'valu', regset([sM2, T0]), regset([T0])),
          valu('v_add_u32', T0, sP1, T0), valu('v_lshlrev_b32', T1, 2, T0), valu('v_add_u32', T1, MEMB, T1),
          valu('v_lshlrev_b32', T2, 2, vL), valu('v_add_u32', T2, DUM, T2), valu('v_cndmask_b32', T1, T2, T1, sM2),
          ds_write('ds_write_b32', T1, vTID, 0))
        A(valu('v_cmp_eq_u32', 'vcc', sB, vTID), valu('v_mov_b32', T1, CNT + 32), valu('v_cndmask_b32', T1, T2, T1),
          ds_write('ds_write_b32', T1, T0, 0))

    def flat_reg(self, dst):
        return [valu('v_and_b32', T0, 15, vL),
                valu('v_lshrrev_b32', T1, 2, T0), valu('v_lshrrev_b32', dst, 3, T0), valu('v_xor_b32', dst, T1, dst),
                valu('v_and_b32', dst, 1, dst), valu('v_lshlrev_b32', dst, 3, dst), valu('v_and_b32', T1, 1, T1), valu('v_or_b32', dst, dst, T1),
                valu('v_and_b32', T1, 1, T0), valu('v_lshl_or_b32', dst, T1, 2, dst), valu('v_and_b32', T1, 2, T0), valu('v_or_b32', dst, dst, T1)]

    def epi_addr(self):
        UW = XA + XO[:2]; UA = CA; F = XO[2]; RB_ = XO[3]
        L = self.flat_reg(F)
        L += [valu('v_and_b32', T0, 31, vL), valu('v_mul_u32_u24', RB_, 768, T0),
              valu('v_lshrrev_b32', T0, 5, vL), salu('s_mul_i32', sT[0], sW, 12), valu('v_add_u32', T0, sT[0], T0)]
        for i in range(6):
            L += [valu('v_add_u32', T1, 2 * i, T0), valu('v_xor_b32', T1, T1, F), valu('v_lshl_add_u32', UW[i], T1, 4, RB_)]
        L += [valu('v_lshrrev_b32', T1, 4, vL), valu('v_xor_b32', F, F, T1), valu('v_lshlrev_b32', F, 4, F),
              valu('v_and_b32', T0, 15, vL), valu('v_mul_u32_u24', T0, 768, T0), salu('s_mul_i32', sT[0], sW, 12288), valu('v_add_u32', T0, sT[0], T0)]
        for j in range(4): L += [valu('v_xor_b32', T1, 64 * j, F), valu('v_add_u32', UA[j], T0, T1)]
        t_ = PHW[0]
        L += [valu('v_mov_b32', t_, LSUM), permswap('v_permlane16_swap_b32', t_, LSUM), valu('v_add_f32', LSUM, LSUM, t_),
              valu('v_mov_b32', t_, LSUM), permswap('v_permlane32_swap_b32', t_, LSUM), valu('v_add_f32', LSUM, LSUM, t_),
              valu('v_and_b32', T0, 15, vL), valu('v_lshlrev_b32', T0, 2, T0), salu('s_lshl_b32', sT[0], sW, 6), valu('v_add_u32', T0, sT[0], T0),
              ds_write('ds_write_b32', T0, MREF, MLM), ds_write('ds_write_b32', T0, LSUM, MLL)]
        return L

    def tail_regs(self):
        t = type('T', (), {})()
        t.TG = v(240); t.NEG = v(241); t.MO = v(242); t.QV = v(243); t.QO = v(239)
        t.WO = [v(2 + 4 * j, 4) for j in range(6)]
        t.OF = [v(26 + i) for i in range(4)]; t.OB = [v(30), v(31)]; t.PI = v(32); t.GO = v(33); t.PB = v(34); t.GB = v(35)
        t.ACC = [v(40 + i) for i in range(6)]; t.MX = v(46); t.LX = v(47)
        t.MS = [v(136 + i) for i in range(4)]; t.LS = [v(140 + i) for i in range(4)]
        t.G = [v(176 + 4 * i, 4) for i in range(4)]
        t.WF = [v(88 + i) for i in range(36)]
        t.U = v(144, 2)
        return t

    def prepA(self, t):
        L = []
        for j in range(4):
            L += [salu('s_add_u32', sT[0], sC0, 8 * j), valu('v_add_u32', T0, sT[0], t.PI), valu('v_cmp_gt_u32', VAL[j], sN, T0),
                  valu('v_min_u32', T0, 255, T0), valu('v_lshlrev_b32', T0, 2, T0), ds_read('ds_read_b32', t.OF[j], T0, MEMB)]
        L += [valu('v_mov_b32', T1, 0x7ffffff0)]
        for j in range(4):
            L += [valu('v_lshl_add_u32', t.OF[j], t.OF[j], 14, t.GO), valu('v_cndmask_b32', t.OF[j], T1, t.OF[j], VAL[j])]
        L += [salu('s_lshl_b32', sSOA, sROW, 8), salu('s_add_u32', sSOA, sSOA, WS_MA)]
        return L

    def prepB(self, t, g0):
        L = [valu('v_mov_b32', T2, 0x7ffffff0)]
        for j in range(2):
            L += [valu('v_add_u32', T0, g0 + 4 * j, t.PB), valu('v_lshrrev_b32', T1, T0, sGM), valu('v_and_b32', T1, 1, T1),
                  valu('v_cmp_eq_u32', VALB[j], 1, T1), valu('v_lshl_add_u32', t.OB[j], T0, 8, t.GB),
                  valu('v_cndmask_b32', t.OB[j], T2, t.OB[j], VALB[j])]
        return L

    def epilogue(self):
        A = self.A; o = self.o
        t = self.tail_regs()
        UW = XA + XO[:2]; UA = CA
        PK = [RING[i] for i in range(4)]
        late = self.wv_loads(self.wv_next, 72)
        if self.wv_next == 0: self.check_flagV(A)
        n = 0
        for ct in range(3):
            for nu in range(2):
                for u in range(2):
                    P = PK[n % 4]; n += 1; x = UACC[ct][nu]
                    for e in range(4): A(valu('v_cvt_pk_bf16_f32', P[e], x[8 * u + 2 * e], x[8 * u + 2 * e + 1]))
                    A(ds_write('ds_write_b128', UW[2 * ct + u], P, nu * 24576))
                    if late and n % 2 == 0: A(late.pop(0))
        A.barrier()
        self.stamp()
        UQ = [v(160 + 4 * i, 4) for i in range(12)]
        D = [v(208 + 4 * j, 4) for j in range(6)]
        M4 = v(232, 4); L4 = v(244, 4); X4 = v(248, 4)
        for ks in range(12): A(ds_read('ds_read_b128', UQ[ks], UA[ks & 3], (ks >> 2) * 256))
        A(late)
        M = [mfma16(D[j], UQ[ks], self.wvq[6 * ks + j], D[j] if ks else 0) for ks in range(12) for j in range(6)]
        TG = t.TG
        ex = [valu('v_lshrrev_b32', t.PB, 4, vL), valu('v_lshlrev_b32', T0, 4, t.PB), salu('s_lshl_b32', sT[0], sW, 6), valu('v_add_u32', T0, sT[0], T0),
              ds_read('ds_read_b128', M4, T0, MLM), ds_read('ds_read_b128', L4, T0, MLL),
              valu('v_mov_b32', T0, 0), ds_read('ds_read_b32', T2, T0, CNT + 32)]
        S_ = Asm(); srd(S_, SRD_X, PWO, 294912); srd(S_, SRD_Y, PQ, 12288)
        def srds(A):
            srd(A, SRD_X, PWO, 294912); srd(A, SRD_Y, PQ, 12288); srd(A, SRD_Z, POUT, 12288)
        ex += [srds]
        ex += [valu('v_and_b32', t.GB, 15, vL), valu('v_mul_u32_u24', T0, 768, t.GB), valu('v_mul_u32_u24', T1, 12, t.PB),
               valu('v_add_u32', t.MO, T0, T1), salu('s_mul_i32', sSO, sW, 96 * 768), salu('s_and_b32', sT[0], sB, 15), salu('s_mul_i32', sT[0], sT[0], 48),
               salu('s_add_u32', sSO, sSO, sT[0]), salu('s_lshr_b32', sT[1], sB, 4), salu('s_mul_i32', sT[2], sT[1], 768), salu('s_add_u32', sP1, sT[2], sT[0]),
               salu('s_lshl_b32', sT[0], sW, 4), salu('s_add_u32', sT[0], sT[0], sT[1]), salu('s_lshl_b32', sSOB, sT[0], 12), salu('s_add_u32', sSOB, sSOB, WS_MB),
               readfirstlane(sRANK, T2), valu('v_lshlrev_b32', t.QO, 2, vL), valu('v_lshlrev_b32', t.GB, 4, t.GB)]
        wo = [[salu('s_add_u32', sSO2, sSO, j * 16 * 768), bload('buffer_load_dwordx3', R('v', t.WO[j].i, 3), t.MO, SRD_X, sSO2, 0, tag='wo')] for j in range(6)]
        wo.append([bload('buffer_load_dword', t.QV, t.QO, SRD_Y, sP1, 0, tag='wo')])
        ex2 = [valu('v_mov_b32', TG, sTAG), valu('v_lshlrev_b32', T1, 16, TG), valu('v_and_b32', TG, 0xffff0000, TG),
               salu('s_mov_b32', sM[0], 0xaaaaaaaa), salu('s_mov_b32', sM[1], 0xaaaaaaaa),
               valu('v_cndmask_b32', TG, T1, TG, sM), valu('v_mov_b32', t.NEG, -3.0e38)]
        for i in range(4):
            ex2 += [valu('v_cndmask_b32', X4[i], M4[i], L4[i], s(94, 2)), valu('v_lshrrev_b32', T1, 16, X4[i]), valu('v_and_b32', X4[i], 0xffff, X4[i]),
                    valu('v_cndmask_b32', X4[i], T1, X4[i], sM), valu('v_or_b32', X4[i], X4[i], TG)]
        ex2 += [salu('s_lshr_b32', sT[0], sW, 1), salu('s_mul_i32', sT[0], sT[0], sN), salu('s_add_u32', sROW, sRANK, sT[0]), salu('s_mov_b32', sC0, 0),
                valu('v_lshrrev_b32', t.PI, 3, vL), valu('v_and_b32', T0, 7, vL), valu('v_lshlrev_b32', t.GO, 4, T0),
                salu('s_and_b32', sT[0], sW, 1), salu('s_lshl_b32', sT[0], sT[0], 7), valu('v_add_u32', t.GO, sT[0], t.GO)]
        ex2 += self.prepA(t) + self.prepB(t, 0)
        fill = {}
        sl = spread(fill, ex, 0, 2)
        sl2 = spread_groups(fill, wo, sl + 1, 4)
        spread(fill, ex2, sl, 2)
        fill.setdefault(max(sl2, 66), []).extend([valu('v_lshl_add_u32', t.MO, t.PB, 10, t.GB), salu('s_lshl_b32', sSO, sB, 14), salu('s_lshl_b32', sT[0], sW, 12),
                                                  salu('s_add_u32', sSO, sSO, sT[0]), salu('s_add_u32', sSO, sSO, WS_MA)])
        A(interleave(M, fill))
        OQ = [v(160 + 4 * i, 4) for i in range(4)]
        for i in range(4):
            for e in range(3): A(valu('v_cvt_pk_bf16_f32', OQ[i][e], D[2 * e][i], D[2 * e + 1][i]))
            A(valu('v_mov_b32', OQ[i][3], X4[i]))
            A(bstore('buffer_store_dwordx4', OQ[i], t.MO, SRD_WS, sSO, i * 256, '', tag='ma'))
        self.stamp()
        self.tail_vm = [e for e in A.vm if e[0] in ('wo', 'ma')]

    def wavemax(self, A, x, with8):
        if with8: A(valu('v_max_f32_dpp', x, x, x, mods='row_ror:8'))
        self.allreduce_g(A, 'v_max_f32', x, T2)

    def merge(self, A, t, n, valid, first, with8):
        G, MS, LS, ACC, MX, LX = t.G, t.MS, t.LS, t.ACC, t.MX, t.LX
        for i in range(n):
            A(valu('v_and_b32', T0, 0xffff, G[i][3]))
            A(valu('v_mov_b32_dpp', MS[i], T0, mods='quad_perm:[0,0,0,0]'), valu('v_mov_b32_dpp', T1, T0, mods='quad_perm:[1,1,1,1]'),
              valu('v_mov_b32_dpp', LS[i], T0, mods='quad_perm:[2,2,2,2]'), valu('v_mov_b32_dpp', T2, T0, mods='quad_perm:[3,3,3,3]'),
              valu('v_lshl_or_b32', MS[i], MS[i], 16, T1), valu('v_lshl_or_b32', LS[i], LS[i], 16, T2),
              valu('v_cndmask_b32', MS[i], t.NEG, MS[i], valid[i]))
        W = MX if first else t.U[0]
        if n == 4: A(valu('v_max3_f32', W, MS[0], MS[1], MS[2]), valu('v_max_f32', W, W, MS[3]))
        else: A(valu('v_max_f32', W, MS[0], MS[1]))
        self.wavemax(A, W, with8)
        if not first:
            A(valu('v_max_f32', W, W, MX), valu('v_sub_f32', T1, MX, W), valu('v_exp_f32', T1, T1), valu('v_mov_b32', MX, W), valu('v_mul_f32', LX, LX, T1))
            for e in range(6): A(valu('v_mul_f32', ACC[e], ACC[e], T1))
        for i in range(n): A(valu('v_sub_f32', MS[i], MS[i], MX))
        for i in range(n): A(valu('v_exp_f32', MS[i], MS[i]))
        for i in range(n):
            z = first and i == 0
            A(valu('v_mul_f32', LX, MS[i], LS[i]) if z else valu('v_fma_f32', LX, MS[i], LS[i], LX))
            wp = R('v', MS[i].i & ~1, 2); ws_ = MS[i].i & 1
            for e in range(3):
                ap = R('v', ACC[2 * e].i, 2)
                A(valu('v_lshlrev_b32', t.U[0], 16, G[i][e]), valu('v_and_b32', t.U[1], 0xffff0000, G[i][e]))
                if z: A(Ins(f'v_pk_mul_f32 {ap}, {t.U}, {wp} op_sel:[0,{ws_}] op_sel_hi:[1,{ws_}]', 'valu', regset([t.U, wp]), regset([ap])))
                else: A(Ins(f'v_pk_fma_f32 {ap}, {t.U}, {wp}, {ap} op_sel:[0,{ws_},0] op_sel_hi:[1,{ws_},1]', 'valu', regset([t.U, wp, ap]), regset([ap])))

    def rs(self, A, t):
        a = t.ACC; L = t.LX
        A(valu('v_mov_b32', T0, L), permswap('v_permlane32_swap_b32', a[0], a[1]), permswap('v_permlane32_swap_b32', a[2], a[3]),
          permswap('v_permlane32_swap_b32', a[4], a[5]), permswap('v_permlane32_swap_b32', T0, L),
          valu('v_add_f32', a[0], a[0], a[1]), valu('v_add_f32', a[2], a[2], a[3]), valu('v_add_f32', a[4], a[4], a[5]), valu('v_add_f32', L, L, T0),
          permswap('v_permlane16_swap_b32', a[0], a[2]), permswap('v_permlane16_swap_b32', a[4], L),
          valu('v_add_f32', a[0], a[0], a[2]), valu('v_add_f32', a[4], a[4], L))

    def poll(self, A, t, n, offs, valid, soff, between=None):
        lp = self.lab('pl'); lc = self.lab('pc')
        def loads(B):
            for j in range(n): B(bload('buffer_load_dwordx4', t.G[j], offs[j], SRD_WS, soff, 0, 'sc1', tag='g'))
        loads(A)
        if between: between(A)
        A.label(lc)
        A.wait_vm()
        for j in range(n):
            A(valu('v_xor_b32', T0, t.G[j][3], t.TG), valu('v_cmp_lt_u32', 'vcc', 0xffff, T0),
              salu('s_and_b64', sM2 if j == 0 else sSV, 'vcc', valid[j]))
            if j: A(salu('s_or_b64', sM2, sM2, sSV))
        A.line(f'    s_cbranch_scc1 {lp}')
        ld = self.lab('pd'); A.label(ld)
        B = Asm(); B.label(lp)
        B(salu('s_add_u32', sCNT, sCNT, 1), salu('s_cmp_ge_u32', sCNT, 400000)); B.line(f'    s_cbranch_scc1 {ld}')
        loads(B); B.line(f'    s_branch {lc}')
        self.tail.append(B.text())

    def tail_phase(self):
        A = self.A; o = self.o
        t = self.tail_regs()
        A.reset_state(self.tail_vm, []); A.nop(2)
        def unpack(B):
            for j in range(6):
                for e in range(3):
                    B(valu('v_lshlrev_b32', t.WF[6 * j + 2 * e], 16, t.WO[j][e]), valu('v_and_b32', t.WF[6 * j + 2 * e + 1], 0xffff0000, t.WO[j][e]))
        A(salu('s_cmp_ge_u32', sROW, 64)); A.line('    s_cbranch_scc1 L_norow')
        B = Asm(); B.label('L_norow'); B.line('    s_waitcnt vmcnt(0)'); unpack(B); B.line('    s_branch L_stageB'); self.tail.append(B.text())
        self.poll(A, t, 4, t.OF, VAL, sSOA, unpack)
        self.merge(A, t, 4, VAL, True, True)
        A(salu('s_cmp_gt_u32', sN, 32)); A.line('    s_cbranch_scc1 L_more')
        A.label('L_rowdone')
        self.rs(A, t)
        a = t.ACC; OQ = t.G[0]
        A(valu('v_add_f32_dpp', a[0], a[0], a[0], mods='row_ror:8'), valu('v_add_f32_dpp', a[4], a[4], a[4], mods='row_ror:8'),
          valu('v_mov_b32', a[1], a[0]), valu('v_mov_b32', a[5], a[4]),
          salu('s_lshl_b32', sSO, sROW, 12), salu('s_lshl_b32', sT[0], sXCC, 8), salu('s_add_u32', sSO, sSO, sT[0]), salu('s_add_u32', sSO, sSO, WS_MB),
          permswap('v_permlane32_swap_b32', a[1], a[0]), permswap('v_permlane32_swap_b32', a[5], a[4]),
          valu('v_cvt_pk_bf16_f32', OQ[1], a[1], a[0]), valu('v_cvt_pk_bf16_f32', OQ[2], a[5], a[4]), valu('v_mov_b32', a[3], a[5]),
          valu('v_mov_b32', OQ[0], OQ[1]), permswap('v_permlane16_swap_b32', a[3], a[5]), permswap('v_permlane16_swap_b32', OQ[0], OQ[1]),
          valu('v_cndmask_b32', T0, t.MX, a[5], s(94, 2)), valu('v_lshrrev_b32', T1, 16, T0), valu('v_and_b32', T0, 0xffff, T0),
          valu('v_cndmask_b32', T0, T1, T0, sM), valu('v_or_b32', OQ[3], T0, t.TG), salu('s_mov_b64', 'exec', 0xff))
        A(bstore('buffer_store_dwordx4', OQ, t.GO, SRD_WS, sSO, 0, 'sc1'))
        A(salu('s_mov_b64', 'exec', -1), salu('s_lshl_b32', sT[0], sN, 1), salu('s_add_u32', sROW, sROW, sT[0]), salu('s_cmp_lt_u32', sROW, 64))
        A.line('    s_cbranch_scc1 L_nextrow')
        save = self.A
        B = Asm(); self.A = B
        B.label('L_nextrow'); B.line('    s_waitcnt vmcnt(0)'); B.nop(4)
        B(salu('s_mov_b32', sC0, 0)); B(self.prepA(t)); self.poll(B, t, 4, t.OF, VAL, sSOA); self.merge(B, t, 4, VAL, True, True)
        B.label('L_more'); B.nop(4)
        B(salu('s_add_u32', sC0, sC0, 32), salu('s_cmp_ge_u32', sC0, sN)); B.line('    s_cbranch_scc1 L_rowdone')
        B(self.prepA(t)); self.poll(B, t, 4, t.OF, VAL, sSOA); self.merge(B, t, 4, VAL, False, True)
        B.line('    s_branch L_more')
        self.tail.append(B.text()); self.A = save
        A.label('L_stageB')
        self.stamp()
        self.poll(A, t, 2, t.OB, VALB, sSOB)
        self.merge(A, t, 2, VALB, True, False)
        A(salu('s_cmp_ge_u32', sGM, 256)); A.line('    s_cbranch_scc1 L_moreB')
        A.label('L_fin')
        B = Asm(); B.label('L_moreB'); B.nop(4)
        B(self.prepB(t, 8)); self.poll(B, t, 2, t.OB, VALB, sSOB); self.merge(B, t, 2, VALB, False, False); B.nop(4)
        B.line('    s_branch L_fin'); self.tail.append(B.text())
        self.rs(A, t)
        L = t.LX
        A(valu('v_mov_b32', a[1], a[0]), valu('v_mov_b32', a[5], a[4]),
          valu('v_mul_u32_u24', T0, 24, t.PB), salu('s_mul_i32', sT[0], sW, 96), salu('s_add_u32', sT[0], sT[0], OUTR),
          permswap('v_permlane32_swap_b32', a[1], a[0]), permswap('v_permlane32_swap_b32', a[5], a[4]),
          valu('v_mov_b32', a[2], a[1]), valu('v_mov_b32', a[3], a[0]), valu('v_mov_b32', L, a[5]), valu('v_mov_b32', T2, a[4]),
          permswap('v_permlane16_swap_b32', a[1], a[2]), permswap('v_permlane16_swap_b32', a[0], a[3]),
          permswap('v_permlane16_swap_b32', a[5], L), permswap('v_permlane16_swap_b32', a[4], T2),
          valu('v_rcp_f32', L, L), valu('v_add_u32', T0, sT[0], T0), valu('v_mov_b32', T1, DUM), valu('v_cmp_eq_u32', 'vcc', 0, t.GB))
        C = [a[1], a[0], a[2], a[3], a[5], a[4]]
        for e in range(6): A(valu('v_mul_f32', C[e], C[e], L))
        A(valu('v_cndmask_b32', T0, T1, T0))
        for e in range(3):
            A(valu('v_cvt_pk_bf16_f32', T1, C[2 * e], C[2 * e + 1]), valu('v_lshlrev_b32', C[2 * e], 16, T1),
              valu('v_and_b32', C[2 * e + 1], 0xffff0000, T1))
        O = [v(136 + i) for i in range(6)]
        for j in range(6):
            cp = R('v', C[j].i & ~1, 2); cs = C[j].i & 1
            for n in range(3):
                op_ = R('v', O[2 * n].i, 2); wp = R('v', t.WF[6 * j + 2 * n].i, 2)
                if j == 0: A(Ins(f'v_pk_mul_f32 {op_}, {wp}, {cp} op_sel:[0,{cs}] op_sel_hi:[1,{cs}]', 'valu', regset([wp, cp]), regset([op_])))
                else: A(Ins(f'v_pk_fma_f32 {op_}, {wp}, {cp}, {op_} op_sel:[0,{cs},0] op_sel_hi:[1,{cs},1]', 'valu', regset([wp, cp, op_]), regset([op_])))
        for sh in ('row_ror:1', 'row_ror:2', 'row_ror:4', 'row_ror:8'):
            for n in range(6): A(valu('v_add_f32_dpp', O[n], O[n], O[n], mods=sh))
        for n in range(3): A(ds_write('ds_write_b64', T0, R('v', O[2 * n].i, 2), 8 * n))
        A(valu('v_min_u32', T0, 11, vL), valu('v_lshlrev_b32', T0, 3, T0), valu('v_lshlrev_b32', a[0], 16, t.QV), valu('v_and_b32', a[1], 0xffff0000, t.QV))
        A.barrier()
        A(salu('s_cmp_lg_u32', sW, 0)); A.line('    s_cbranch_scc1 L_out')
        P = [v(160 + 2 * i, 2) for i in range(4)]
        for w in range(4): A(ds_read('ds_read_b64', P[w], T0, OUTR + 96 * w))
        A(Ins(f'v_pk_add_f32 {P[0]}, {P[0]}, {P[1]}', 'valu', regset([P[0], P[1]]), regset([P[0]])),
          Ins(f'v_pk_add_f32 {P[2]}, {P[2]}, {P[3]}', 'valu', regset([P[2], P[3]]), regset([P[2]])),
          Ins(f'v_pk_add_f32 {P[0]}, {P[0]}, {P[2]}', 'valu', regset([P[0], P[2]]), regset([P[0]])))
        A(valu('v_cvt_pk_bf16_f32', T1, P[0][0], P[0][1]), valu('v_lshlrev_b32', P[0][0], 16, T1), valu('v_and_b32', P[0][1], 0xffff0000, T1),
          valu('v_add_f32', P[0][0], P[0][0], a[0]), valu('v_add_f32', P[0][1], P[0][1], a[1]), salu('s_mov_b64', 'exec', 0xfff),
          valu('v_cvt_pk_bf16_f32', T0, P[0][0], P[0][1]))
        A(bstore('buffer_store_dword', T0, t.QO, SRD_Z, sP1, 0))
        A(salu('s_mov_b64', 'exec', -1))
        A.label('L_out')
        self.stamp()
        self.stamp_out()
        A.label('L_end')
        A.line('    s_endpgm')

    def build(self):
        self.prologue()
        A = self.A
        body = A.out
        txt = '\n'.join(body) + '\n' + ''.join(self.tail) + 'L_codeend:\n    s_endpgm\n'
        ninstr = sum(1 for l in txt.split('\n') if l.startswith('    ') and not l.strip().startswith(';'))
        self.ninstr = ninstr
        pad = f'.fill {self.o.pad // 4}, 4, 0xbf810000\n' if self.o.pad else ''
        hdr = open('standalone__detection_seg_mask2former__vision.s.ref').read().split('; Override launch')[0]
        s_ = hdr + f'; @launch grid=(256,1,1) block=(256,1,1) lds={LDS_BYTES}\n' + '.amdgcn_target "amdgcn-amd-amdhsa--gfx950"\n.text\n' + txt + pad
        s_ += f'''.section .rodata,"a"
.p2align 6
.amdhsa_kernel {KN}
  .amdhsa_next_free_vgpr 512
  .amdhsa_next_free_sgpr 102
  .amdhsa_accum_offset 256
  .amdhsa_group_segment_fixed_size 0
  .amdhsa_kernarg_size 96
  .amdhsa_user_sgpr_count 2
  .amdhsa_user_sgpr_kernarg_segment_ptr 1
  .amdhsa_system_sgpr_workgroup_id_x 1
  .amdhsa_float_denorm_mode_32 3
.end_amdhsa_kernel
'''
        return s_


def main():
    ap = argparse.ArgumentParser()
    ap.add_argument('-o', default='k.s')
    ap.add_argument('--dump', default='')
    ap.add_argument('--stamps', action='store_true')
    ap.add_argument('--cyc', action='store_true')
    ap.add_argument('--fine', type=int, default=-1)
    ap.add_argument('--stampw', type=int, default=0)
    ap.add_argument('--npre-late', type=int, default=2)
    ap.add_argument('--npre-prod', type=int, default=0)
    ap.add_argument('--x1-slot', type=int, default=38)
    ap.add_argument('--pv-late', type=int, default=0)
    ap.add_argument('--kflag', type=int, default=4)
    ap.add_argument('--plan-e', type=eval, default=[(0,0),(0,16),(0,12),(14,18)])
    ap.add_argument('--plan-l', type=eval, default=[(0,12),(0,16),(0,12),(12,18)])
    ap.add_argument('--tab-step', type=int, default=2)
    ap.add_argument('--fakegrp', type=int, default=0)
    ap.add_argument('--pf-lines', type=int, default=17)
    ap.add_argument('--pad', type=int, default=0)
    o = ap.parse_args()
    g = Gen(o)
    t = g.build()
    open(o.o, 'w').write(t)
    print(f'{o.o}: {g.ninstr} instrs, {g.A.nops} nops', file=sys.stderr)

if __name__ == '__main__':
    main()
```

```python
import sys, math, argparse
from asmlib import *

KN = 'standalone__detection_seg_mask2former__vision_kernel'
LOG2E = 1.4426950408889634
S1 = 96 ** -0.5 * LOG2E
S2 = 384 ** -0.5 * LOG2E
THR = 30.0

S0, MISC, SL1, R0 = 0, 49152, 65536, 114688
PH = MISC; PL = PH + 8192; RR = PL + 4096; RM = RR + 256; ONES = RM + 256; AL = ONES + 768
FL = AL + 256; CNT = FL + 64; DUM = FL + 256; MEMB = DUM + 512
MLM = RR; MLL = RM; OUTR = ONES
STAMP = MISC + 16128
assert MEMB + 1024 <= STAMP and ONES % 256 == 0
LDS_BYTES = 163840
WS_A = 0; WS_V = 65536; WS_TAB = 0x60000; WS_MA = 0x100000; WS_MB = 0x500000; WS_DUMP = 0x1000000; WS_STAMP = 0x8000000
WS_BYTES = 268435456
DB_A = 32; DB_V = 36; DB_EP = 37

sW = s(3); sB = s(2)
sT = [s(i) for i in range(4, 8)]
SRD_HI = s(8, 4); SRD_LO = s(12, 4); SRD_WL = s(16, 4); SRD_WS = s(20, 4); SRD_DB = s(24, 4)
SRD_X = s(28, 4); SRD_Y = s(32, 4); SRD_Z = s(36, 4)
sHI = s(40)
sSO = s(41); sSO2 = s(42)
sWB = s(43)
sVF = s(0); sXB = s(101); sWS = s(98); sROW = s(99); sSOA = s(80); sSOB = s(81); sC0 = s(100)
VAL = [s(66 + 2 * i, 2) for i in range(4)]; VALB = [s(74, 2), s(76, 2)]
sEP = s(44); sTAG = s(45); sXCC = s(46); sN = s(47); sRANK = s(48); sGM = s(49)
sM = s(50, 2); sM2 = s(52, 2); sSV = s(54, 2); sCNT = s(56); sROLE = s(57); sP0 = s(58); sP1 = s(59)
sST = 60
PQ, PHI, PLO, PWL, PWQ, PWK, PWV, PWO = [s(64 + 2 * i, 2) for i in range(8)]
PWM, POUT, PDB, PWS = [s(80 + 2 * i, 2) for i in range(4)]
sK = [s(i) for i in range(88, 100)]

vTID = v(0); vL = v(1)
XG = [v(2 + i) for i in range(6)]
XA = [v(8 + i) for i in range(4)]
XO = [v(12 + i) for i in range(4)]
XT = [v(16 + i) for i in range(6)]
XW = v(22); FLA = XW
CA = [v(23 + i) for i in range(4)]
PHW = [v(27 + i) for i in range(4)]
PHR = [v(31 + i) for i in range(4)]
PLW = v(35); CD = v(36); T0 = v(37); T1 = v(38)
PLR = [v(39), v(40)]
RRD = v(41); RWR = v(42)
LT = [v(43 + i) for i in range(6)]
LIN = v(49)
SLO = [v(50 + 4 * i, 4) for i in range(4)]
LSQ = v(66, 4); LSM = v(70, 4)
MREF = v(74); LSUM = v(75); SUMA = v(76); EMAX = v(77)
POOL = [[v(78 + 2 * g), v(79 + 2 * g)] for g in range(4)]
LST = v(86); T2 = v(87)
RING = [v(88 + 4 * i, 4) for i in range(8)]
SACC = [v(120 + 4 * i, 4) for i in range(4)]
GA = v(136, 4); CX = v(140, 4)
RB = [(v(144, 4), v(148, 4)), (v(152, 4), v(156, 4))]
UACC = [[v(160 + 16 * (2 * ct + nu), 16) for nu in range(2)] for ct in range(3)]
LACC = [[v(160 + 4 * (6 * mu + j), 4) for j in range(6)] for mu in range(4)]
WF = [[v(56 + 24 * b + 4 * j, 4) for j in range(6)] for b in range(2)]
FF = [[v(104 + 16 * b + 4 * m, 4) for m in range(4)] for b in range(2)]
FA = [v(144 + i) for i in range(4)]
WD = [v(148 + i) for i in range(3)]
WT = [v(136 + i) for i in range(6)]
FDB = v(153)
AFR = [a(4 * i, 4) for i in range(12)]
STG = [[a(48 + 48 * b + 4 * i, 4) for i in range(12)] for b in range(4)]
SPARE = [a(240 + 4 * i, 4) for i in range(4)]


def flat(rho):
    b0, b1, b2, b3 = rho & 1, (rho >> 1) & 1, (rho >> 2) & 1, (rho >> 3) & 1
    return 8 * (b2 ^ b3) + 4 * b0 + 2 * b1 + b2


def srd(A, dst, ptr, nbytes):
    A(salu('s_mov_b32', dst[0], ptr[0]), salu('s_and_b32', dst[1], ptr[1], 0xffff),
      salu('s_mov_b32', dst[2], nbytes), salu('s_mov_b32', dst[3], 0x20000))


class Gen:
    def __init__(self, o):
        self.o = o
        self.A = Asm()
        self.tail = []
        self.uid = 0
        self.nstamp = 0

    def lab(self, p):
        self.uid += 1
        return f'L_{p}_{self.uid}'

    def stamp(self, A=None, fine=False):
        if self.o.probe >= 0 and not fine:
            A = A or self.A
            i = self.nstamp; self.nstamp += 1
            if i == 0: A.line('    s_memrealtime s[60:61]\n    s_waitcnt lgkmcnt(0)'); A.lg = []
            if i == self.o.probe: A.line('    s_memrealtime s[62:63]\n    s_waitcnt lgkmcnt(0)'); A.lg = []
            return
        if not self.o.stamps: return
        if (self.o.fine >= 0) != fine and self.nstamp > 0: return
        A = A or self.A
        i = self.nstamp; self.nstamp += 1
        assert i < 16
        A.line('    s_memtime s[60:61]' if self.o.cyc else '    s_memrealtime s[60:61]')
        A.line(f'    s_lshl_b32 s62, s3, 6')
        A.line(f'    s_waitcnt lgkmcnt(0)'); A.lg = []
        X2 = v(154) if self.o.fine == 11 else T2
        A.line(f'    v_mov_b32 {T1}, s60')
        A.line(f'    v_mov_b32 {X2}, s62')
        A.line(f'    ds_write_b32 {X2}, {T1} offset:{STAMP + 4 * i}')
        A.line(f'    s_waitcnt lgkmcnt(0)')
        A.clock += 7

    def stamp_out(self):
        if self.o.probe >= 0:
            A = self.A
            A.line(f"""    s_cmp_lg_u32 s2, {self.o.probe_wg}
    s_cbranch_scc1 L_end
    s_cmp_lg_u32 s3, 0
    s_cbranch_scc1 L_end
    s_sub_u32 s62, s62, s60
    s_mul_i32 s62, s62, 100
    s_add_u32 s62, s62, 20000
L_probe:
    s_sleep 1
    s_memrealtime s[4:5]
    s_waitcnt lgkmcnt(0)
    s_sub_u32 s4, s4, s60
    s_cmp_lt_u32 s4, s62
    s_cbranch_scc1 L_probe""")
            return
        if not self.o.stamps: return
        A = self.A
        l = self.lab('nst')
        A.wait_vm()
        A(salu('s_cmp_lg_u32', sW, self.o.stampw)); A.line(f'    s_cbranch_scc1 {l}')
        A(valu('v_lshlrev_b32', T0, 2, vL), salu('s_lshl_b32', sT[0], sW, 6), valu('v_add_u32', T0, sT[0], T0), ds_read('ds_read_b32', v(160), T0, STAMP),
          valu('v_mov_b32', v(161), 0), valu('v_lshlrev_b32', T0, 3, vL),
          salu('s_lshl_b32', sT[0], sB, 7), salu('s_add_u32', sT[0], sT[0], WS_STAMP), salu('s_mov_b64', 'exec', 0xffff))
        A(bstore('buffer_store_dwordx2', v(160, 2), T0, SRD_WS, sT[0]))
        A(salu('s_mov_b64', 'exec', -1))
        A.wait_vm()
        A.label(l)

    def dump_lds(self, base, nbytes):
        A = self.A
        A.wait_vm(); A.barrier()
        A(valu('v_lshlrev_b32', T0, 4, vTID), salu('s_mul_i32', sT[0], sB, nbytes), salu('s_add_u32', sT[0], sT[0], WS_DUMP))
        A(valu('v_add_u32', T1, base, T0))
        for i in range(nbytes // 4096):
            A(ds_read('ds_read_b128', RING[0], T1, 0), bstore('buffer_store_dwordx4', RING[0], T0, SRD_WS, sT[0]),
              salu('s_add_u32', sT[0], sT[0], 4096), valu('v_add_u32', T1, 4096, T1))
            A.wait_vm()
        A.line('    s_endpgm')

    def dump_regs(self, regs):
        A = self.A
        A.wait_vm(); A.wait_lg(); A.flush_hazards()
        n = len(regs)
        A(valu('v_lshlrev_b32', T0, 2, vTID), salu('s_mul_i32', sT[0], sB, n * 1024), salu('s_add_u32', sT[0], sT[0], WS_DUMP))
        for r in regs:
            if r.k == 'a':
                A(valu('v_accvgpr_read_b32', T1, r)); r = T1
            A(bstore('buffer_store_dword', r, T0, SRD_WS, sT[0]), salu('s_add_u32', sT[0], sT[0], 1024))
            A.wait_vm()
        A.line('    s_endpgm')

    def allreduce_g(self, A, op, x, t):
        A(valu('v_mov_b32', t, x), permswap('v_permlane16_swap_b32', t, x), valu(op, x, x, t),
          valu('v_mov_b32', t, x), permswap('v_permlane32_swap_b32', t, x), valu(op, x, x, t))

    def spin_guard(self, A, label_retry):
        A(salu('s_add_u32', sCNT, sCNT, 1), salu('s_cmp_lt_u32', sCNT, 400000))
        A.line(f'    s_cbranch_scc1 {label_retry}')

    def prologue(self):
        A = self.A; o = self.o
        A.line(f'.globl {KN}\n.p2align 8\n.type {KN},@function\n{KN}:')
        A(salu('s_cmp_ge_u32', sB, 256)); A.line('    s_cbranch_scc1 L_end')
        A(smem('s_load_dwordx16', s(64, 16), s(0, 2), 0), smem('s_load_dwordx8', s(80, 8), s(0, 2), 64))
        A(valu('v_lshrrev_b32', T0, 6, vTID), valu('v_and_b32', vL, 63, vTID), readfirstlane(sW, T0),
          valu('v_lshlrev_b32', LIN, 4, vL), salu('s_mov_b32', sCNT, 0))
        A.nop(1)
        self.stamp()
        l = self.lab('cp')
        A(salu('s_cmp_lg_u32', sW, 2)); A.line(f'    s_cbranch_scc1 {l}')
        A.line('    s_getpc_b64 s[4:5]\nL_pc:')
        A.line(f'    s_lshr_b32 s6, s2, 3\n    s_mul_i32 s6, s6, {o.pf_lines}\n    v_min_u32 v56, {o.pf_lines - 1}, v1\n    v_add_u32 v56, s6, v56')
        A.line('    v_lshlrev_b32 v56, 7, v56\n    v_min_u32 v56, L_codeend-L_pc, v56\n    v_mov_b32 v57, s5\n    v_add_co_u32 v56, vcc, s4, v56')
        A.line('    s_nop 1\n    v_addc_co_u32 v57, vcc, 0, v57, vcc\n    global_load_dword v157, v[56:57], off')
        A.label(l)
        A.vm.append(('junk', v(157).regs()))
        self.role()

    def touch(self, waves, nlines, srd_, sbase, reg):
        A = self.A
        l = self.lab('tc')
        w0, w1 = waves
        if w0 == 0:
            A(valu('v_min_u32', T0, nlines - 1, vTID), salu('s_cmp_ge_u32', sW, w1))
        else:
            A(valu('v_min_u32', T0, nlines - 1, vL), salu('s_cmp_lg_u32', sW, w0))
        A(valu('v_lshlrev_b32', T0, 7, T0))
        A.line(f'    s_cbranch_scc1 {l}')
        A.line(f'    buffer_load_dword {reg}, {T0}, {srd_}, {sbase} offen')
        A.label(l)
        A.vm.append(('junk', reg.regs())); A.clock += 1

    def w_touch(self, reg=159):
        A = self.A
        A(salu('s_lshr_b32', sT[0], sB, 3), salu('s_mul_i32', sT[0], sT[0], 9216))
        self.touch((0, 2), 72, SRD_WL, sT[0], v(reg))

    def rows_dma(self, srd_, rows, ssrc, slds, flags, tag):
        A = self.A
        A(salu('s_mov_b32', 'exec_hi', 0xffff))
        for (so, lo, f) in rows:
            A(salu('s_add_u32', 'm0', slds, lo), salu('s_add_u32', sSO, ssrc, so))
            if isinstance(f, R) or f: A(valu('v_xor_b32', T0, f if isinstance(f, R) else 16 * f, LIN))
            A(bload_lds(T0 if (isinstance(f, R) or f) else LIN, srd_, sSO, 0, flags, tag=tag))
        A(salu('s_mov_b32', 'exec_hi', -1))

    def flo_dma(self):
        A = self.A
        A(salu('s_mul_i32', sT[2], sB, 49152), salu('s_mul_i32', sT[0], sW, 3072), salu('s_add_u32', sT[2], sT[2], sT[0]),
          salu('s_mul_i32', sT[1], sW, 12288), salu('s_add_u32', sT[1], sT[1], R0))
        rows = [((16 * (r & 3) + (r >> 2)) * 768, r * 768, flat(r)) for r in range(16)]
        self.rows_dma(SRD_LO, rows, sT[2], sT[1], 'nt', 'flo')

    def common_srds(self):
        A = self.A
        srd(A, SRD_HI, PHI, 50331648); srd(A, SRD_WS, PWS, WS_BYTES); srd(A, SRD_DB, PDB, 256)

    def addr_setup1(self):
        A = self.A
        RH = v(60)
        A(salu('s_mov_b32', sK[0], 196608))
        for b in range(3):
            A(valu('v_add_u32', T0, 64 * b, vL), valu('v_mul_u32_u24', T1, 1366, T0), valu('v_lshrrev_b32', RH, 16, T1),
              valu('v_mul_u32_u24', T1, 48, RH), valu('v_sub_u32', T0, T0, T1),
              valu('v_lshlrev_b32', T1, 2, RH), valu('v_xor_b32', T0, T0, T1), valu('v_lshlrev_b32', T0, 4, T0),
              valu('v_and_b32', T1, 1, RH), valu('v_mul_u32_u24', T1, 768, T1), valu('v_add_u32', T0, T0, T1),
              valu('v_lshrrev_b32', T1, 1, RH), valu('v_mul_lo_u32', T1, T1, sK[0]), valu('v_add_u32', XG[b], T0, T1))
            if b: A(valu('v_subrev_u32', XG[b], 1024 * b, XG[b]))
            A(valu('v_xor_b32', XG[3 + b], 32, XG[b]))
        A(salu('s_lshr_b32', sT[0], sB, 1), salu('s_mul_i32', sHI, sT[0], 393216), salu('s_and_b32', sT[0], sB, 1),
          salu('s_mul_i32', sT[0], sT[0], 98304), salu('s_add_u32', sHI, sHI, sT[0]), salu('s_mul_i32', sT[0], sW, 6144),
          salu('s_add_u32', sHI, sHI, sT[0]))

    def wd_setup(self, rowstride, dst, colw):
        A = self.A
        for b in range(3):
            A(valu('v_add_u32', T0, 64 * b, vL), valu('v_mul_u32_u24', T1, 5462, T0), valu('v_lshrrev_b32', T1, 16, T1),
              valu('v_mul_u32_u24', T2, 12, T1), valu('v_sub_u32', T0, T0, T2),
              valu('v_lshrrev_b32', T2, 2, T1), valu('v_and_b32', T2, 2, T2), valu('v_xor_b32', T0, T0, T2),
              valu('v_lshlrev_b32', T0, 4, T0), valu('v_mul_u32_u24', T1, rowstride, T1), valu('v_add_u32', dst[b], T0, T1))
        if colw:
            A(salu('s_mul_i32', sT[0], sW, 192))
            for b in range(3): A(valu('v_add_u32', dst[b], sT[0], dst[b]))

    def wtr_setup(self, wa, wb):
        A = self.A
        A(valu('v_lshrrev_b32', T0, 4, vL), valu('v_lshlrev_b32', T1, 3, T0), valu('v_bfe_u32', T2, vL, 2, 2),
          valu('v_add_u32', T1, T1, T2), valu('v_mul_u32_u24', T1, 192, T1), valu('v_and_b32', T2, 3, vL),
          valu('v_lshl_add_u32', T1, T2, 3, T1), valu('v_and_b32', T0, 1, T0), valu('v_lshlrev_b32', T0, 5, T0),
          valu('v_add_u32', wa, T1, T0), valu('v_sub_u32', wb, T1, T0))

    def fa_setup(self, dst, base):
        A = self.A
        A(valu('v_and_b32', T0, 15, vL),
          valu('v_lshrrev_b32', T1, 2, T0), valu('v_lshrrev_b32', T2, 3, T0), valu('v_xor_b32', T2, T1, T2),
          valu('v_and_b32', T2, 1, T2), valu('v_lshlrev_b32', T2, 3, T2), valu('v_and_b32', T1, 1, T1), valu('v_or_b32', T2, T2, T1),
          valu('v_and_b32', T1, 1, T0), valu('v_lshl_or_b32', T2, T1, 2, T2), valu('v_and_b32', T1, 2, T0), valu('v_or_b32', T2, T2, T1),
          valu('v_lshrrev_b32', T1, 4, vL), valu('v_xor_b32', T2, T2, T1), valu('v_lshlrev_b32', T2, 4, T2),
          valu('v_mul_u32_u24', T0, 768, T0), valu('v_add_u32', T0, base, T0))
        for j in range(4):
            A(valu('v_xor_b32', T1, 64 * j, T2), valu('v_add_u32', dst[j], T0, T1))

    def x_loads(self, t, buf):
        L = []
        for g in range(4):
            for b in range(3):
                G = [salu('s_add_u32', sSO2, sHI, t * 16 * 1536 + g * 1536)] if b == 0 else []
                G.append(bload('buffer_load_dwordx4', STG[buf][3 * g + b], XG[3 * (g & 1) + b], SRD_HI, sSO2, 1024 * b, 'nt', tag=f'x{t}'))
                L.append(G)
        return L

    def x_dma(self, t):
        L = []
        for g in range(4):
            for b in range(3):
                G = [salu('s_add_u32', 'm0', sXB, (t & 1) * 65536 + 3 * g * 1024), salu('s_add_u32', sSO2, sHI, t * 16 * 1536 + g * 1536)] if b == 0 else []
                G.append(bload_lds(XG[3 * (g & 1) + b], SRD_HI, sSO2, 1024 * b, 'nt', tag=f'x{t}'))
                L.append(G)
        return L

    def w_dma(self, ks):
        L = []
        pc = ks % 4
        for i in range(6):
            g = []
            if i % 3 == 0:
                g.append(salu('s_add_u32', 'm0', sWB, (pc & 1) * 24576 + (pc >> 1) * 65536 + i * 1024))
                g.append(salu('s_add_u32', sSO, sWS, ks * 24576 + (i // 3) * 3072))
            g.append(bload_lds(WD[i % 3], SRD_WL, sSO, 1024 * (i % 3), '', tag=f'w{ks}'))
            L.append(g)
        return L

    def w_setup(self):
        A = self.A
        RH = v(60); FW = v(61); RW = v(62)
        A(salu('s_mul_i32', sWB, sW, 6144), salu('s_mov_b32', sWS, sWB), salu('s_and_b32', sT[0], sW, 1), salu('s_lshl_b32', sT[0], sT[0], 3))
        for b in range(3):
            A(valu('v_add_u32', T0, 64 * b, vL), valu('v_mul_u32_u24', T1, 1366, T0), valu('v_lshrrev_b32', RH, 16, T1),
              valu('v_mul_u32_u24', T1, 48, RH), valu('v_sub_u32', T0, T0, T1),
              valu('v_lshl_or_b32', T1, RH, 1, sT[0]), valu('v_xor_b32', T0, T0, T1), valu('v_mul_u32_u24', T1, 768, RH),
              valu('v_lshl_add_u32', WD[b], T0, 4, T1))
            if b: A(valu('v_subrev_u32', WD[b], 1024 * b, WD[b]))
        A(valu('v_lshrrev_b32', T0, 4, vL), valu('v_bfe_u32', T1, vL, 2, 2), valu('v_lshl_add_u32', RW, T0, 3, T1), valu('v_mul_u32_u24', RW, 768, RW),
          valu('v_and_b32', T2, 1, vL), valu('v_lshl_add_u32', RW, T2, 3, RW),
          valu('v_and_b32', T0, 1, T0), valu('v_lshlrev_b32', T0, 3, T0), valu('v_lshl_or_b32', FW, T1, 1, T0),
          valu('v_bfe_u32', T2, vL, 1, 1), salu('s_mul_i32', sT[0], sW, 12), valu('v_add_u32', T2, sT[0], T2))
        for j in range(6):
            A(valu('v_add_u32', T0, 2 * j, T2), valu('v_xor_b32', T0, T0, FW), valu('v_lshl_add_u32', WT[j], T0, 4, RW))

    def role(self):
        A = self.A; o = self.o
        A(salu('s_lshr_b32', sROLE, sB, 4), salu('s_bfe_u32', sP0, sB, 0x20001), salu('s_bitcmp1_b32', sB, 3))
        A.line('    s_cbranch_scc0 L_early')
        A(salu('s_cmp_lt_u32', sROLE, 6)); A.line('    s_cbranch_scc1 L_prodA')
        A(salu('s_cmp_lt_u32', sROLE, 9)); A.line('    s_cbranch_scc1 L_prodV')
        st = (list(A.vm), list(A.lg))
        self.prod_touch()
        srd(A, SRD_WL, PWL, 294912); self.w_touch()
        srd(A, SRD_LO, PLO, 12582912); self.flo_dma(); self.common_srds(); self.addr_setup1(); self.setup_all()
        for t in range(o.npre_late): A(self.x_loads(t, t))
        A.line('    s_branch L_late')
        A.reset_state(*st); A.label('L_prodA'); self.prodA()
        A.line('    s_branch L_emain')
        A.reset_state(*st); A.label('L_prodV'); self.prodV()
        A.line('    s_branch ' + ('L_late' if o.pv_late else 'L_emain'))
        A.reset_state(*st); A.label('L_early')
        srd(A, SRD_X, PWQ, 294912)
        A(salu('s_mul_i32', sT[0], sP0, 73728), salu('s_mul_i32', sT[1], sROLE, 36 * 128), salu('s_add_u32', sT[0], sT[0], sT[1]))
        self.touch((3, 4), 36, SRD_X, sT[0], v(158))
        srd(A, SRD_LO, PLO, 12582912); self.flo_dma()
        srd(A, SRD_WL, PWL, 294912); self.w_touch()
        self.common_srds()
        l = self.lab('ep')
        A(salu('s_or_b32', sT[0], sB, sW), salu('s_cmp_lg_u32', sT[0], 0)); A.line(f'    s_cbranch_scc1 {l}')
        A.line('    s_memrealtime s[6:7]\n    s_waitcnt lgkmcnt(0)\n    s_or_b32 s6, s6, 1\n    v_mov_b32 v56, s6\n    v_mov_b32 v55, 0')
        A.line(f'    s_mov_b64 exec, 1\n    buffer_store_dword v56, v55, {SRD_DB}, 0 offen offset:{DB_EP*4} sc1\n    s_mov_b64 exec, -1')
        A.label(l)
        A.vm.append(('junk', set())); A.ev = {}
        self.addr_setup1(); self.setup_all()
        A.label('L_emain')
        ns = self.nstamp
        self.main(0, 'E')
        A.line('    s_branch L_tail')
        A.label('L_late')
        vm = [('flo', set())] * 16
        for t in range(o.npre_late): vm += [(f'x{t}', STG[t][i].regs()) for i in range(12)]
        A.reset_state(vm, [])
        self.nstamp = ns
        self.main(o.npre_late, 'L')
        A.label('L_tail')
        self.tail_phase()

    def prod_touch(self):
        A = self.A
        srd(A, SRD_Y, PWM, 294912); srd(A, SRD_X, PWK, 294912); srd(A, SRD_Z, PQ, 12288)
        A(salu('s_sub_u32', sT[0], sROLE, 9), salu('s_mul_i32', sT[1], sT[0], 165), valu('v_min_u32', T0, 164, vTID), valu('v_add_u32', T0, sT[1], T0),
          valu('v_mul_u32_u24', T1, 21846, T0), valu('v_lshrrev_b32', T1, 16, T1), valu('v_mul_u32_u24', T1, 384, T1), valu('v_lshl_add_u32', T0, T0, 7, T1),
          salu('s_and_b32', sT[2], sB, 1), salu('s_mul_i32', sT[1], sT[2], 384), salu('s_cmp_eq_u32', sW, 3))
        l = self.lab('pt'); l2 = self.lab('pt')
        A.line(f'    s_cbranch_scc1 {l}')
        A.line(f'    buffer_load_dword v156, {T0}, {SRD_Y}, {sT[1]} offen')
        A.line(f'    s_branch {l2}')
        A.label(l)
        A(salu('s_mul_i32', sT[1], sP0, 73728), salu('s_mul_i32', sT[2], sT[2], 36864), salu('s_add_u32', sT[1], sT[1], sT[2]),
          salu('s_mul_i32', sT[2], sT[0], 42 * 128), salu('s_add_u32', sT[1], sT[1], sT[2]), salu('s_mul_i32', sT[2], sT[0], 14 * 128),
          valu('v_min_u32', T0, 41, vL), valu('v_lshlrev_b32', T0, 7, T0), valu('v_min_u32', T1, 13, vL), valu('v_lshlrev_b32', T1, 7, T1))
        A.line(f'    buffer_load_dword v156, {T0}, {SRD_X}, {sT[1]} offen')
        A.line(f'    buffer_load_dword v155, {T1}, {SRD_Z}, {sT[2]} offen')
        A.label(l2)
        A.vm.append(('junk', v(156).regs())); A.vm.append(('junk', v(155).regs())); A.ev = {}

    def signal(self, sdw):
        A = self.A
        A(valu('v_mov_b32', T0, 1), valu('v_mov_b32', T1, sdw), valu('v_lshlrev_b32', T1, 2, T1), salu('s_mov_b64', 'exec', 1))
        A.line(f'    buffer_atomic_add {T0}, {T1}, {SRD_DB}, 0 offen sc1')
        A(salu('s_mov_b64', 'exec', -1))

    def prodA(self):
        A = self.A; o = self.o
        sH, sKS = sP0, sP1
        fs = (lambda: self.stamp(fine=True)) if o.fine == 10 else (lambda: None)
        fs()
        A(salu('s_and_b32', sT[0], sB, 1), salu('s_mul_i32', sKS, sT[0], 6), salu('s_add_u32', sKS, sKS, sROLE))
        srd(A, SRD_Y, PWM, 294912)
        MD = v(8)
        A(valu('v_lshrrev_b32', T0, 2, vL), valu('v_mul_u32_u24', T0, 768, T0), valu('v_and_b32', T1, 3, vL),
          valu('v_lshl_add_u32', MD, T1, 4, T0),
          salu('s_mul_i32', sSO, sW, 96 * 768), salu('s_lshl_b32', sT[0], sKS, 6), salu('s_add_u32', sSO, sSO, sT[0]),
          salu('s_mul_i32', sT[1], sW, 6144), salu('s_add_u32', sT[1], sT[1], 90112))
        for i in range(6):
            A(salu('s_add_u32', 'm0', sT[1], i * 1024), salu('s_add_u32', sSO2, sSO, i * 16 * 768), bload_lds(MD, SRD_Y, sSO2, 0, '', tag='pa'))
        srd(A, SRD_Z, PQ, 12288)
        A(salu('s_lshl_b32', sT[0], sW, 2), salu('s_lshr_b32', sT[0], 0x1890, sT[0]), salu('s_and_b32', sT[0], sT[0], 15),
          salu('s_lshl_b32', sT[0], sT[0], 4), salu('s_mul_i32', sT[2], sW, 3072), salu('s_add_u32', sT[1], sT[2], MISC))
        for r in range(4): A(salu('s_xor_b32', sK[r], sT[0], 16 * flat(r)))
        self.rows_dma(SRD_Z, [(r * 768, r * 768, sK[r]) for r in range(4)], sT[2], sT[1], '', 'pa')
        WK = [[v(232 + 12 * tau + 4 * u, 4) for u in range(3)] for tau in range(2)]
        KD = v(9)
        lk = self.lab('nk')
        A(salu('s_cmp_eq_u32', sW, 3)); A.line(f'    s_cbranch_scc1 {lk}')
        srd(A, SRD_X, PWK, 294912)
        A(salu('s_mul_i32', sSO, sH, 73728), salu('s_mul_i32', sT[0], sKS, 32 * 192), salu('s_add_u32', sSO, sSO, sT[0]),
          salu('s_lshl_b32', sT[0], sW, 11), salu('s_add_u32', sSO, sSO, sT[0]), salu('s_add_u32', 'm0', sT[0], R0 + 40960))
        for i in range(2): A(bload_lds(LIN, SRD_X, sSO, i * 1024, '', tag='pa'))
        A.label(lk)
        fs()
        srd(A, SRD_WL, PWL, 294912); srd(A, SRD_LO, PLO, 12582912); self.common_srds(); self.addr_setup1()
        QA, QB, QA2, QB2 = v(13), v(14), v(15), v(16)
        QF = [v(17 + i) for i in range(4)]
        self.wtr_setup(QA, QB); self.fa_setup(QF, MISC)
        A(salu('s_lshl_b32', sT[0], sW, 6), valu('v_add_u32', QA, sT[0], QA), valu('v_add_u32', QB, sT[0], QB),
          valu('v_add_u32', QA2, 65536, QA), valu('v_add_u32', QB2, 65536, QB))
        MA = v(21)
        A(valu('v_lshrrev_b32', T0, 4, vL), valu('v_lshlrev_b32', T0, 3, T0), valu('v_bfe_u32', T1, vL, 2, 2), valu('v_add_u32', T0, T0, T1),
          valu('v_lshlrev_b32', T0, 6, T0), valu('v_and_b32', T1, 3, vL), valu('v_lshl_add_u32', T0, T1, 4, T0),
          valu('v_add_u32', MA, 90112, T0))
        srd(A, SRD_X, PWQ, 294912)
        QD = [v(10 + i) for i in range(3)]
        self.wd_setup(192, QD, False)
        A(salu('s_mul_i32', sSO, sH, 73728), salu('s_mul_i32', sT[0], sW, 18432), salu('s_add_u32', sSO, sSO, sT[0]))
        for pc in range(3):
            A(salu('s_mul_i32', sT[0], sW, 3), salu('s_add_u32', sT[0], sT[0], pc), salu('s_mul_i32', sT[1], sT[0], 6144),
              salu('s_cmp_ge_u32', sT[0], 8), salu('s_cselect_b32', sT[2], 16384, 0), salu('s_add_u32', sT[1], sT[1], sT[2]))
            for aa in range(2):
                for b in range(3):
                    A(salu('s_add_u32', 'm0', sT[1], (3 * aa + b) * 1024), salu('s_add_u32', sSO2, sSO, (2 * pc + aa) * 3072),
                      bload_lds(QD[b], SRD_X, sSO2, 0, '', tag='pa'))
        fs()
        A.wait_vm()
        A.barrier()
        fs()
        D = [v(56, 4), v(60, 4)]; E = [v(64, 4), v(68, 4)]; QP = v(72, 4)
        QQ = [v(88 + 4 * i, 4) for i in range(12)]; TT = [[v(136 + 8 * i + 4 * j, 4) for j in range(2)] for i in range(12)]
        lm = self.lab('pam'); lj = self.lab('paj')
        A(salu('s_cmp_eq_u32', sW, 3)); A.line(f'    s_cbranch_scc1 {lm}')
        self.w_touch(255); self.flo_dma()
        def gemm(rd):
            def reads(ks):
                return [ds_read('ds_read_b128', QQ[ks], QF[ks & 3], (ks >> 2) * 256)] + rd(ks, TT[ks])
            for ks in range(3): A(reads(ks))
            for ks in range(12):
                for j in range(2): A(mfma16(D[j], TT[ks][j], QQ[ks], D[j] if ks else 0))
                if ks + 3 < 12: A(reads(ks + 3))
        def rdq(ks, T):
            L = []
            for j in range(2):
                ad = ((QA, QB) if ks < 8 else (QA2, QB2))[j]
                for r in range(2):
                    L.append(ds_read('ds_read_b64_tr_b16', T[j][2 * r:2 * r + 2], ad, (ks % 8) * 6144 + 32 * j + r * 768))
            return L
        gemm(rdq)
        for j in range(2):
            A(valu('v_cvt_pk_bf16_f32', QP[2 * j], D[j][0], D[j][1]), valu('v_cvt_pk_bf16_f32', QP[2 * j + 1], D[j][2], D[j][3]))
        A(salu('s_lshl_b32', sT[0], sW, 10), salu('s_add_u32', sT[0], sT[0], R0 + 36864), valu('v_add_u32', T0, sT[0], LIN),
          ds_write('ds_write_b128', T0, QP))
        A.barrier()
        A.line(f'    s_branch {lj}')
        A.reset_state([], []); A.label(lm)
        def rdm(ks, T):
            return [ds_read('ds_read_b64_tr_b16', T[j][2 * r:2 * r + 2], MA, ks * 2048 + r * 256 + 8 * j) for j in range(2) for r in range(2)]
        A(valu('v_bfe_u32', T0, vL, 2, 2), valu('v_lshlrev_b32', T0, 3, T0), valu('v_and_b32', T1, 3, vL), valu('v_add_u32', T0, T0, T1),
          valu('v_mul_u32_u24', T0, 192, T0), valu('v_lshrrev_b32', T1, 4, vL), valu('v_lshl_add_u32', T0, T1, 3, T0), valu('v_add_u32', KD, R0 + 40960, T0))
        gemm(rdm)
        for tau in range(2):
            for u in range(3):
                for e in range(2):
                    A(ds_read('ds_read_b64', WK[tau][u][2 * e:2 * e + 2], KD, tau * 768 + u * 64 + e * 32))
        A(salu('s_mov_b32', sK[1], S1), salu('s_mov_b32', sK[2], S2), valu('v_add_u32', T0, R0 + 36864, LIN),
          salu('s_mul_i32', sT[0], sH, 12), salu('s_add_u32', sT[0], sT[0], sKS), salu('s_lshl_b32', sT[0], sT[0], 10),
          salu('s_add_u32', sT[1], sH, DB_A))
        for tau in range(2):
            for i in range(4):
                A(valu('v_mul_f32', D[tau][i], sK[2], D[tau][i]))
        fs()
        A.barrier()
        fs()
        for u in range(3): A(ds_read('ds_read_b128', QQ[u], T0, u * 1024))
        for u in range(3):
            for tau in range(2): A(mfma16(E[tau], WK[tau][u], QQ[u], E[tau] if u else 0))
        for tau in range(2):
            for i in range(4):
                A(valu('v_fma_f32', D[tau][i], E[tau][i], sK[1], D[tau][i]))
        for tau in range(2):
            A(valu('v_cvt_pk_bf16_f32', QP[2 * tau], D[tau][0], D[tau][1]), valu('v_cvt_pk_bf16_f32', QP[2 * tau + 1], D[tau][2], D[tau][3]))
        A(bstore('buffer_store_dwordx4', QP, LIN, SRD_WS, sT[0], WS_A, 'sc1', tag='st'))
        fs()
        A.wait_vm()
        fs()
        self.signal(sT[1])
        self.flo_dma()
        A.label(lj)
        A.reset_state([], [])
        A.nop(2)
        self.setup_all()

    def prodV(self):
        A = self.A; o = self.o
        sH, sJ = sP0, sP1
        A(salu('s_and_b32', sT[0], sB, 1), salu('s_mul_i32', sJ, sT[0], 3), salu('s_add_u32', sJ, sJ, sROLE), salu('s_sub_u32', sJ, sJ, 6))
        srd(A, SRD_X, PWV, 294912)
        VD = v(8)
        A(valu('v_lshrrev_b32', T0, 1, vL), valu('v_mul_u32_u24', T0, 192, T0), valu('v_and_b32', T1, 1, vL),
          valu('v_lshl_add_u32', VD, T1, 4, T0),
          salu('s_mul_i32', sSO, sH, 73728), salu('s_mul_i32', sT[0], sW, 96 * 192), salu('s_add_u32', sSO, sSO, sT[0]),
          salu('s_lshl_b32', sT[0], sJ, 5), salu('s_add_u32', sSO, sSO, sT[0]), salu('s_mul_i32', sT[1], sW, 3072))
        for i in range(3):
            A(salu('s_add_u32', 'm0', sT[1], i * 1024), salu('s_add_u32', sSO2, sSO, i * 32 * 192), bload_lds(VD, SRD_X, sSO2, 0, '', tag='pv'))
        srd(A, SRD_WL, PWL, 294912); self.w_touch()
        srd(A, SRD_LO, PLO, 12582912); self.common_srds(); self.addr_setup1()
        VA = v(9)
        A.wait_vm()
        self.flo_dma()
        if o.pv_late: A(self.x_loads(0, 0))
        A(valu('v_lshrrev_b32', T0, 4, vL), valu('v_lshlrev_b32', T0, 3, T0), valu('v_bfe_u32', T1, vL, 2, 2), valu('v_add_u32', T0, T0, T1),
          valu('v_lshlrev_b32', T0, 5, T0), valu('v_and_b32', T1, 3, vL), valu('v_lshl_add_u32', T0, T1, 3, T0),
          salu('s_mul_i32', sT[1], sW, 3072), valu('v_add_u32', VA, sT[1], T0))
        ON = v(160, 4); FR = [v(164 + 4 * i, 4) for i in range(3)]; D = v(176, 4); CS = v(180, 4)
        for i in range(4): A(valu('v_mov_b32', ON[i], 0x3f803f80))
        for u in range(3):
            for r in range(2): A(ds_read('ds_read_b64_tr_b16', FR[u][2 * r:2 * r + 2], VA, u * 1024 + r * 128))
        for u in range(3): A(mfma16(D, ON, FR[u], D if u else 0))
        A(valu('v_and_b32', T0, 15, vL), valu('v_lshlrev_b32', T0, 4, T0), salu('s_lshl_b32', sT[0], sW, 2),
          valu('v_add_u32', T1, sT[0], T0), ds_write('ds_write_b32', T1, D[0], 16384))
        A.barrier()
        A(ds_read('ds_read_b128', CS, T0, 16384))
        A(valu('v_add_f32', CS[0], CS[0], CS[1]), valu('v_add_f32', CS[2], CS[2], CS[3]), valu('v_add_f32', CS[0], CS[0], CS[2]),
          valu('v_mul_f32', CS[0], 1.0 / 384, CS[0]))
        for u in range(3):
            for i in range(4):
                x = FR[u][i]
                A(valu('v_lshlrev_b32', T0, 16, x), valu('v_and_b32', T1, 0xffff0000, x), valu('v_sub_f32', T0, T0, CS[0]),
                  valu('v_sub_f32', T1, T1, CS[0]), valu('v_cvt_pk_bf16_f32', x, T0, T1))
        A(salu('s_mul_i32', sT[0], sH, 12), salu('s_mul_i32', sT[1], sW, 3), salu('s_add_u32', sT[0], sT[0], sT[1]),
          salu('s_mul_i32', sT[0], sT[0], 6), salu('s_add_u32', sT[0], sT[0], sJ), salu('s_lshl_b32', sT[0], sT[0], 10),
          salu('s_add_u32', sT[0], sT[0], WS_V))
        for u in range(3):
            A(bstore('buffer_store_dwordx4', FR[u], LIN, SRD_WS, sT[0], 0, 'sc1', tag='st'), salu('s_add_u32', sT[0], sT[0], 6144))
        A.wait_vm(); A.barrier()
        l = self.lab('pub')
        A(salu('s_cmp_lg_u32', sW, 0)); A.line(f'    s_cbranch_scc1 {l}')
        self.signal(DB_V)
        A.label(l)
        A.reset_state([], []); A.nop(2)
        self.setup_all()
        if o.pv_late:
            for t in range(1, o.npre_late): A(self.x_loads(t, t))

    def setup_all(self):
        A = self.A
        self.w_setup()
        self.fa_setup(FA, R0)
        A(valu('v_mov_b32', T0, 0x3f803f80), valu('v_lshlrev_b32', T1, 2, vTID), valu('v_min_u32', T1, 764, T1),
          ds_write('ds_write_b32', T1, T0, ONES), valu('v_mov_b32', T0, 0), valu('v_lshlrev_b32', T1, 2, vL),
          ds_write('ds_write_b32', T1, T0, FL))
        self.addr_setup2()

    def main(self, npre, cls):
        A = self.A; o = self.o
        self.cls = cls
        dbg = o.dump if o.dump else ''
        for ks in range(4): A(self.w_dma(ks))
        self.stamp()
        post = [t for t in range(npre, 4)]
        def reads(ks):
            b = ks & 1
            L = [ds_read('ds_read_b128', FF[b][0], FA[ks & 3], (ks >> 2) * 256)]
            wr = []
            for j in range(6):
                wr.append([ds_read('ds_read_b64_tr_b16', WF[b][j][2 * r:2 * r + 2], WT[j], (ks & 1) * 24576 + r * 3072) for r in range(2)])
            L += wr[0]
            for m in range(1, 4): L.append(ds_read('ds_read_b128', FF[b][m], FA[ks & 3], m * 12288 + (ks >> 2) * 256))
            for j in range(1, 6): L += wr[j]
            if ks & 1:
                for j in range(6): L.append(valu('v_xor_b32', WT[j], 0x10000, WT[j]))
            return L
        A.wait_vm('w0'); A.barrier()
        self.stamp()
        A(reads(0))
        aload = []
        for i in range(12):
            G = [salu('s_mul_i32', sSO, sW, 12288)] if i == 0 else ([salu('s_add_u32', sSO, sSO, 4096)] if i % 4 == 0 else [])
            aload.append(G + [bload('buffer_load_dwordx4', AFR[i], LIN, SRD_WS, sSO, (i % 4) * 1024, '', tag='A')])
        x0 = self.x_dma(0) if npre == 0 else []
        for ks in range(12):
            b = ks & 1
            M = [mfma16(LACC[m][j], WF[b][j], FF[b][m], LACC[m][j] if ks else 0) for j in range(6) for m in range(4)]
            fill = {}
            if ks < 11:
                def sync(A, ks=ks):
                    A.wait_vm(f'w{ks+1}', also_lg=True); A.barrier()
                fill[0] = [sync]
                spread(fill, reads(ks + 1), 0, 1)
            extra = []
            if ks <= 7: extra = self.w_dma(ks + 4)
            if ks == o.kflag:
                extra = extra + [[valu('v_lshlrev_b32', T0, 2, vL), bload('buffer_load_dword', FDB, T0, SRD_DB, 0, 0, 'sc1', tag='fl')]]
            if ks == 8: extra = [[self.check_flagA]] + aload[:6]
            if ks == 9: extra = aload[6:]
            if ks == 10: extra = x0[:6]
            if ks == 11: extra = x0[6:]
            spread_groups(fill, extra, 2, 4 if len(extra) <= 6 else 3)
            if o.fine == 11: self.stamp(fine=True)
            A(interleave(M, fill))
        self.stamp()
        if o.fine == 11: self.stamp(fine=True)
        A.barrier()
        LW = v(56); PK = [v(60 + 4 * i, 4) for i in range(4)]
        A(valu('v_and_b32', T0, 15, vL),
          valu('v_lshrrev_b32', T1, 2, T0), valu('v_lshrrev_b32', T2, 3, T0), valu('v_xor_b32', T2, T1, T2),
          valu('v_and_b32', T2, 1, T2), valu('v_lshlrev_b32', T2, 3, T2), valu('v_and_b32', T1, 1, T1), valu('v_or_b32', T2, T2, T1),
          valu('v_and_b32', T1, 1, T0), valu('v_lshl_or_b32', T2, T1, 2, T2), valu('v_and_b32', T1, 2, T0), valu('v_or_b32', T2, T2, T1),
          valu('v_mul_u32_u24', T0, 768, T0), valu('v_add_u32', LW, R0, T0),
          valu('v_bfe_u32', T0, vL, 4, 1), valu('v_lshlrev_b32', T0, 1, T0), valu('v_lshrrev_b32', T1, 5, vL), valu('v_add_u32', T0, T0, T1),
          salu('s_mul_i32', sT[0], sW, 12), valu('v_add_u32', T0, sT[0], T0))
        LWJ = [v(57), v(58), v(59)]
        for jp in range(3):
            A(valu('v_add_u32', T1, 4 * jp, T0), valu('v_xor_b32', T1, T1, T2), valu('v_lshl_add_u32', LWJ[jp], T1, 4, LW))
        n = 0
        for m in range(4):
            for jp in range(3):
                P = PK[n % 4]; n += 1
                x, y = LACC[m][2 * jp], LACC[m][2 * jp + 1]
                A(valu('v_cvt_pk_bf16_f32', P[0], x[0], x[1]), valu('v_cvt_pk_bf16_f32', P[1], x[2], x[3]),
                  valu('v_cvt_pk_bf16_f32', P[2], y[0], y[1]), valu('v_cvt_pk_bf16_f32', P[3], y[2], y[3]),
                  permswap('v_permlane16_swap_b32', P[0], P[2]), permswap('v_permlane16_swap_b32', P[1], P[3]),
                  ds_write('ds_write_b128', LWJ[jp], P, m * 12288))
        A.barrier()
        self.stamp()
        if dbg == 'lat':
            self.dump_lds(R0, 49152); return
        SA4 = CX
        A(salu('s_mul_i32', sT[0], sW, 12288))
        FO = [v(78 + i) for i in range(4)]; ONQ = v(82, 4)
        for j in range(4): A(valu('v_add_u32', FO[j], sT[0], FA[j]))
        for i in range(4): A(valu('v_mov_b32', ONQ[i], 0x3f803f80))
        rd = []; M = []
        nq = 0
        for ks in range(12):
            q = RING[nq % 8]; nq += 1
            rd.append((len(M), ds_read('ds_read_b128', q, FO[ks & 3], (ks >> 2) * 256)))
            M.append(mfma16(GA, q, q, GA if ks else 0)); M.append(mfma16(LSM, q, ONQ, LSM if ks else 0))
        for ks in range(12): M.append(mfma16(SA4, ONQ, AFR[ks], SA4 if ks else 0))
        for m in range(4):
            for ks in range(12):
                q = RING[nq % 8]; nq += 1
                rd.append((len(M), ds_read('ds_read_b128', q, FA[ks & 3], m * 12288 + (ks >> 2) * 256)))
                M.append(mfma16(SLO[m], q, AFR[ks], SLO[m] if ks else 0))
        fill = {}
        self.place_reads(fill, rd, M, 6)
        ex = [valu('v_lshrrev_b32', T0, 4, vL), valu('v_mul_u32_u24', T0, 80, T0)]
        for t in range(4):
            ex += [valu('v_add_u32', T1, 4 * t, T0), ds_bperm(LSQ[t], T1, GA[t])]
        spread(fill, ex, 30, 1)
        fill.setdefault(46, []).append(valu('v_mov_b32', SUMA, SA4[0]))
        wr = []
        for t in range(npre):
            wr += [ds_write('ds_write_b128', XW, STG[t][i], i * 1024) for i in range(12)] + [valu('v_xor_b32', XW, 0x10000, XW)]
        if npre <= 1: spread_groups(fill, self.x_dma(1), o.x1_slot if npre == 0 else 3, 4)
        spread(fill, wr, 1, 1, 3)
        A(interleave(M, fill))
        if dbg == 'slo':
            self.dump_regs([r for q in SLO for r in (q[0], q[1], q[2], q[3])] + [LSQ[i] for i in range(4)] + [LSM[i] for i in range(4)] + [SUMA]); return
        self.stamp()
        A(valu('v_mov_b32', LSUM, 0), valu('v_mov_b32', MREF, 0), valu('v_mov_b32', FLA, FL))
        A.wait_vm('x0'); A.wait_lg()
        SM, sfill, ex = self.stats(0, RING)
        A(interleave(SM, sfill)); A(ex)
        A.barrier()
        self.stamp()
        self.wvq = SPARE + STG[2] + STG[3] + STG[0] + STG[1] + AFR + SLO + SACC
        wv = 0
        plan = o.plan_e if cls == 'E' else o.plan_l
        for t in range(4):
            ns_, nu_ = plan[t]
            sl_ = self.x_dma(t + 1) if t in (1, 2) else []
            chk = wv == 0 and ns_ + nu_ > 0
            hi = min(52, wv + ns_); sl_ += self.wv_loads(wv, hi); wv = hi
            hi = min(52 if t < 3 else 72, wv + nu_); ul = self.wv_loads(wv, hi); wv = hi
            if chk: self.check_flagV(A)
            self.step(t, ul, sl_)
            if dbg == f'step{t}': return
        self.wv_next = wv
        self.epilogue()

    def wv_loads(self, i0, i1):
        L = []
        for i in range(i0, i1):
            G = [salu('s_add_u32', sSO2, sP0, (i // 4) * 4096)] if (i == i0 or i % 4 == 0) else []
            G.append(bload('buffer_load_dwordx4', self.wvq[i], LIN, SRD_WS, sSO2, (i % 4) * 1024, '', tag='wv'))
            L.append(G)
        return L

    def place_reads(self, fill, rd, M, ahead):
        for k, (m, ins) in enumerate(rd):
            if k < ahead: slot = -1
            else: slot = rd[k - ahead][0]
            fill.setdefault(slot, []).append(ins)

    def check_flagA(self, A):
        lr = self.lab('fa'); ls = self.lab('fs')
        A.label(lr)
        A(valu('v_cmp_le_u32', 'vcc', 12, FDB), salu('s_lshr_b64', sM, 'vcc', 32), readlane(sEP, FDB, DB_EP),
          readlane(sVF, FDB, DB_V),
          salu('s_and_b32', sM[0], sM[0], 15), salu('s_cmp_eq_u32', sM[0], 15), salu('s_cselect_b32', sM[0], sEP, 0),
          salu('s_cmp_eq_u32', sM[0], 0))
        A.line(f'    s_cbranch_scc1 {ls}')
        lb = self.lab('fb'); A.label(lb)
        B = Asm(); B.label(ls)
        B.line('    s_sleep 2')
        B(valu('v_lshlrev_b32', T0, 2, vL), bload('buffer_load_dword', FDB, T0, SRD_DB, 0, 0, 'sc1'))
        B.wait_vm()
        self.spin_guard(B, lr)
        B.line(f'    s_branch {lb}')
        self.tail.append(B.text())
        A(salu('s_mul_i32', sTAG, sEP, 0x9E3779B1))
        A.line('    s_getreg_b32 s46, hwreg(HW_REG_XCC_ID)'); A.clock += 1
        A(salu('s_and_b32', sXCC, sXCC, 15))
        if self.o.fakegrp:
            self.fake_group(A)
        A(salu('s_and_b32', sT[0], sTAG, 0xfffffff0), salu('s_or_b32', sT[0], sT[0], sXCC),
          valu('v_mov_b32', T0, sT[0]), salu('s_lshl_b32', sT[1], sB, 2), salu('s_add_u32', sT[1], sT[1], WS_TAB), valu('v_mov_b32', T1, 0),
          salu('s_mov_b64', 'exec', 1))
        A(bstore('buffer_store_dword', T0, T1, SRD_WS, sT[1], 0, 'sc1', tag='tab'))
        A(salu('s_mov_b64', 'exec', -1))

    def check_flagV(self, A):
        ls = self.lab('fv'); lb = self.lab('fvb')
        A(salu('s_cmp_lt_u32', sVF, 24)); A.line(f'    s_cbranch_scc1 {ls}')
        A.label(lb)
        B = Asm(); B.label(ls); B.nop(8)
        B(valu('v_mov_b32', T2, 4 * DB_V), bload('buffer_load_dword', T2, T2, SRD_DB, 0, 0, 'sc1'), readfirstlane(sVF, T2),
          salu('s_add_u32', sCNT, sCNT, 1), salu('s_cmp_ge_u32', sCNT, 400000))
        B.line(f'    s_cbranch_scc1 {lb}')
        B(salu('s_cmp_lt_u32', sVF, 24)); B.line(f'    s_cbranch_scc1 {ls}')
        B.line(f'    s_branch {lb}')
        self.tail.append(B.text())

    def fake_group(self, A):
        A(salu('s_lshr_b32', sT[0], sB, 3), salu('s_cmp_lt_u32', sT[0], self.o.fakegrp), salu('s_cselect_b32', sT[0], 8, 0),
          salu('s_and_b32', sXCC, sXCC, 7), salu('s_add_u32', sXCC, sXCC, sT[0]))

    def addr_setup2(self):
        A = self.A
        G = v(56); Q = v(57); F = v(58)
        A(valu('v_lshrrev_b32', G, 4, vL), valu('v_and_b32', Q, 15, vL))
        A(valu('v_and_b32', T0, 3, Q), valu('v_lshlrev_b32', T0, 2, T0), valu('v_lshrrev_b32', T1, 1, Q), valu('v_and_b32', T1, 2, T1),
          valu('v_or_b32', T0, T0, T1), valu('v_xor_b32', T0, T0, G), valu('v_lshlrev_b32', T0, 4, T0), valu('v_mul_u32_u24', T1, 768, Q),
          salu('s_mul_i32', sT[0], sW, 12288))
        for j in range(4):
            A(valu('v_xor_b32', T2, 64 * j, T0), valu('v_add_u32', XA[j], T1, T2), valu('v_add_u32', XO[j], sT[0], XA[j]))
        A(valu('v_add_u32', XW, sT[0], LIN), salu('s_mov_b32', sXB, sT[0]))
        HH = v(59); JJ = v(60); II = v(61); HB = v(62)
        A(valu('v_lshrrev_b32', HH, 5, vL), valu('v_and_b32', T0, 1, G), valu('v_lshlrev_b32', T0, 1, T0), valu('v_and_b32', T1, 1, vL),
          valu('v_or_b32', JJ, T0, T1), valu('v_lshrrev_b32', II, 2, Q), valu('v_and_b32', T0, 2, vL), valu('v_lshlrev_b32', HB, 2, T0))
        for ct in range(3):
            A(salu('s_mul_i32', sT[0], sW, 3), salu('s_add_u32', sT[0], sT[0], ct), salu('s_lshr_b32', sT[1], sT[0], 2),
              salu('s_lshl_b32', sT[1], sT[1], 8), salu('s_and_b32', sT[0], sT[0], 3), salu('s_lshl_b32', sT[0], sT[0], 2))
            for r in range(2):
                A(valu('v_lshlrev_b32', T0, 2, II), valu('v_xor_b32', T0, T0, JJ), valu('v_xor_b32', T0, sT[0], T0))
                if r: A(valu('v_xor_b32', T0, 2, T0))
                A(valu('v_lshl_add_u32', T0, T0, 4, HB), valu('v_add_u32', T0, sT[1], T0),
                  valu('v_lshl_add_u32', T1, HH, 3, II), valu('v_add_u32', T1, 4 * r, T1), valu('v_mul_u32_u24', T1, 768, T1),
                  valu('v_add_u32', XT[2 * ct + r], T0, T1))
                A(valu('v_lshrrev_b32', T0, 1, II), valu('v_and_b32', T1, 1, II),
                  valu('v_lshl_add_u32', T2, T0, 2, T1), valu('v_add_u32', T2, 8 * r, T2), valu('v_lshl_add_u32', T2, HH, 4, T2),
                  valu('v_mul_u32_u24', T2, 768, T2),
                  valu('v_lshl_or_b32', T1, T1, 2, T0))
                A(valu('v_xor_b32', T0, r, T0), valu('v_lshl_or_b32', T1, T0, 3, T1),
                  valu('v_xor_b32', T1, T1, JJ), valu('v_xor_b32', T1, sT[0], T1), valu('v_lshl_add_u32', T1, T1, 4, HB),
                  valu('v_add3_u32', T1, T1, T2, sT[1]), valu('v_add_u32', LT[2 * ct + r], R0, T1))
        A(salu('s_lshl_b32', sT[0], sW, 11), salu('s_add_u32', sT[0], sT[0], PH),
          valu('v_lshrrev_b32', T0, 1, Q), valu('v_lshrrev_b32', T1, 1, G), valu('v_xor_b32', T0, T0, T1), valu('v_lshlrev_b32', T0, 4, T0),
          valu('v_and_b32', T1, 1, G), valu('v_lshl_add_u32', T0, T1, 3, T0), valu('v_lshlrev_b32', T1, 7, Q), valu('v_add_u32', T1, sT[0], T1))
        for g in range(4): A(valu('v_xor_b32', T2, 32 * g, T0), valu('v_add_u32', PHW[g], T1, T2))
        A(valu('v_bfe_u32', T0, vL, 1, 3), valu('v_xor_b32', T0, T0, HH), valu('v_lshlrev_b32', T0, 4, T0),
          valu('v_and_b32', T1, 31, vL), valu('v_lshlrev_b32', T1, 7, T1), valu('v_add_u32', T1, PH, T1))
        for g in range(4): A(valu('v_xor_b32', T2, 32 * g, T0), valu('v_add_u32', PHR[g], T1, T2))
        A(salu('s_lshl_b32', sT[0], sW, 10), salu('s_add_u32', sT[0], sT[0], PL), valu('v_lshlrev_b32', T0, 6, Q), valu('v_add_u32', T0, sT[0], T0),
          valu('v_lshl_add_u32', T0, II, 4, T0), valu('v_lshl_add_u32', PLW, G, 2, T0))
        A(valu('v_bfe_u32', T0, vL, 2, 2), valu('v_xor_b32', T0, T0, HH), valu('v_lshlrev_b32', T0, 4, T0),
          valu('v_and_b32', T1, 31, vL), valu('v_lshlrev_b32', T1, 6, T1), valu('v_add_u32', T1, PL, T1),
          valu('v_add_u32', PLR[0], T1, T0), valu('v_xor_b32', T0, 32, T0), valu('v_add_u32', PLR[1], T1, T0))
        A(valu('v_lshlrev_b32', T0, 4, G), valu('v_add_u32', RRD, RR, T0),
          salu('s_lshl_b32', sT[0], sW, 6), salu('s_add_u32', sT[0], sT[0], RR), valu('v_lshlrev_b32', T0, 2, Q), valu('v_add_u32', T0, sT[0], T0),
          valu('v_lshlrev_b32', T1, 2, vL), valu('v_add_u32', T1, DUM, T1), valu('v_cmp_eq_u32', 'vcc', II, G),
          valu('v_cndmask_b32', RWR, T1, T0))
        A(valu('v_lshlrev_b32', T0, 2, II), salu('s_mov_b32', sT[1], 0x1890), valu('v_lshrrev_b32', T0, T0, sT[1]), valu('v_and_b32', T0, 15, T0),
          valu('v_xor_b32', T0, T0, G), valu('v_lshlrev_b32', T0, 4, T0),
          valu('v_mul_u32_u24', T1, 3072, II), salu('s_mul_i32', sT[0], sW, 12288), salu('s_add_u32', sT[0], sT[0], R0),
          valu('v_add_u32', T1, sT[0], T1), valu('v_and_b32', T2, 3, Q), valu('v_cmp_eq_u32', 'vcc', 0, T2),
          valu('v_mov_b32', F, 768), valu('v_cndmask_b32', CD, 0, F))
        for j in range(4):
            A(valu('v_xor_b32', T2, 64 * j, T0), valu('v_add_u32', T2, T1, T2), valu('v_mov_b32', F, ONES + 64 * (j ^ 1) + 32),
              valu('v_cndmask_b32', CA[j], F, T2))
        A(salu('s_mov_b32', sK[4], 0x22222222), salu('s_mov_b32', sK[5], 0x22222222), salu('s_mov_b32', sK[6], 0xcccccccc),
          salu('s_mov_b32', sK[7], 0xcccccccc), salu('s_mov_b32', sK[8], 0x88888888), salu('s_mov_b32', sK[9], 0x88888888),
          salu('s_mov_b32', sK[1], 1.0 / 384), salu('s_mov_b32', sK[2], 1e-5), salu('s_mov_b32', sK[3], THR),
          salu('s_mul_i32', sP0, sW, 73728), salu('s_add_u32', sP0, sP0, WS_V))

    def softmax_group(self, t, g, rb, first=False, raw=False):
        r, m = rb
        S = SACC[g]; slo = SLO[g][t]
        L = []
        for i in range(4): L.append(valu('v_fma_f32', m[i], -m[i], SUMA, slo))
        for i in range(4): L.append(valu('v_add_f32', m[i], m[i], S[i]))
        if raw or first:
            for i in range(4): L.append(valu('v_mul_f32', m[i], m[i], r[i]))
            if raw: return L
            L += [valu('v_max3_f32', MREF, m[0], m[1], m[2]), valu('v_max_f32', MREF, MREF, m[3]),
                  lambda A: self.allreduce_g(A, 'v_max_f32', MREF, T2)]
            for i in range(4): L.append(valu('v_sub_f32', m[i], m[i], MREF))
        else:
            for i in range(4): L.append(valu('v_fma_f32', m[i], m[i], r[i], -MREF))
        L += self.softmax_fin(t, g, rb, track=True)
        return L

    def softmax_fin(self, t, g, rb, track):
        r, m = rb
        L = []
        if track:
            if g == 0: L += [valu('v_max3_f32', EMAX, m[0], m[1], m[2]), valu('v_max_f32', EMAX, EMAX, m[3])]
            else: L += [valu('v_max3_f32', EMAX, m[0], m[1], EMAX), valu('v_max3_f32', EMAX, m[2], m[3], EMAX)]
        for i in range(4): L.append(valu('v_exp_f32', m[i], m[i]))
        for i in range(4): L.append(valu('v_mul_f32', r[i], r[i], m[i]))
        L += [valu('v_add_f32', m[0], m[0], m[1]), valu('v_add_f32', m[2], m[2], m[3])]
        if g == 0: L.append(valu('v_add_f32', LST, m[0], m[2]))
        else: L += [valu('v_add_f32', m[0], m[0], m[2]), valu('v_add_f32', LST, LST, m[0])]
        L += [valu('v_cvt_pk_bf16_f32', m[2], r[0], r[1]), valu('v_cvt_pk_bf16_f32', m[3], r[2], r[3]),
              valu('v_add_f32', r[0], r[0], r[1]), valu('v_add_f32', r[2], r[2], r[3]), valu('v_add_f32', POOL[g][t & 1], r[0], r[2]),
              ds_write('ds_write_b64', PHW[g], m[2:4], 0)]
        return L

    def softmax_pk(self, t, g, rb):
        r, m = rb
        S = SACC[g]
        def pk(op, d, srcs, mods=''):
            return Ins(f'{op} {d}, ' + ', '.join(str(x) for x in srcs) + (' ' + mods if mods else ''), 'valu', regset(srcs), regset([d]))
        def bc(x):
            return (R('v', x.i & ~1, 2), x.i & 1)
        sa, sas = bc(SUMA); sl, sls = bc(SLO[g][t]); mr, mrs = bc(MREF)
        L = []
        for h in range(2):
            L.append(pk('v_pk_fma_f32', m[2*h:2*h+2], [m[2*h:2*h+2], sa, sl], f'op_sel:[0,{sas},{sls}] op_sel_hi:[1,{sas},{sls}] neg_lo:[1,0,0] neg_hi:[1,0,0]'))
        for h in range(2): L.append(pk('v_pk_add_f32', m[2*h:2*h+2], [m[2*h:2*h+2], S[2*h:2*h+2]]))
        for h in range(2):
            L.append(pk('v_pk_fma_f32', m[2*h:2*h+2], [m[2*h:2*h+2], r[2*h:2*h+2], mr], f'op_sel:[0,0,{mrs}] op_sel_hi:[1,1,{mrs}] neg_lo:[0,0,1] neg_hi:[0,0,1]'))
        L += [valu('v_max3_f32', EMAX, m[0], m[1], EMAX), valu('v_max3_f32', EMAX, m[2], m[3], EMAX)]
        for i in range(4): L.append(valu('v_exp_f32', m[i], m[i]))
        for h in range(2): L.append(pk('v_pk_mul_f32', r[2*h:2*h+2], [r[2*h:2*h+2], m[2*h:2*h+2]]))
        L += [pk('v_pk_add_f32', m[0:2], [m[0:2], m[2:4]]),
              valu('v_cvt_pk_bf16_f32', m[2], r[0], r[1]), valu('v_cvt_pk_bf16_f32', m[3], r[2], r[3]),
              ds_write('ds_write_b64', PHW[g], m[2:4], 0),
              pk('v_pk_add_f32', r[0:2], [r[0:2], r[2:4]]), valu('v_add_f32', m[0], m[0], m[1]),
              valu('v_add_f32', POOL[g][t & 1], r[0], r[1]), valu('v_add_f32', LST, LST, m[0])]
        return L

    def pool_write(self):
        L = []
        for g in range(4):
            L += [valu('v_cvt_pk_bf16_f32', T0, POOL[g][0], POOL[g][1]), valu('v_xor_b32', T1, 16 * g, PLW) if g else valu('v_mov_b32', T1, PLW),
                  ds_write('ds_write_b32', T1, T0, 0)]
        return L

    def r_reads(self, g, rb):
        return [ds_read('ds_read_b128', rb[0], RRD, 64 * g), ds_read('ds_read_b128', rb[1], RRD, 64 * g + 256)]

    def rare_softmax(self, t, lab, back):
        B = Asm(); B.label(lab)
        B.line('    s_waitcnt lgkmcnt(0)'); B.nop(16)
        for g in range(4):
            B(self.r_reads(g, RB[0])); B(self.softmax_group(t, g, RB[0], raw=True))
            m = RB[0][1]
            if g == 0: B(valu('v_max3_f32', EMAX, m[0], m[1], m[2]), valu('v_max_f32', EMAX, EMAX, m[3]))
            else: B(valu('v_max3_f32', EMAX, m[0], m[1], EMAX), valu('v_max3_f32', EMAX, m[2], m[3], EMAX))
        self.allreduce_g(B, 'v_max_f32', EMAX, T2)
        B(valu('v_max_f32', EMAX, EMAX, MREF), valu('v_sub_f32', T0, MREF, EMAX), valu('v_exp_f32', T0, T0), valu('v_mov_b32', MREF, EMAX),
          valu('v_mul_f32', LSUM, LSUM, T0))
        if t & 1:
            for g in range(4): B(valu('v_mul_f32', POOL[g][0], POOL[g][0], T0))
        B(valu('v_and_b32', T1, 15, vL), valu('v_lshlrev_b32', T1, 2, T1), salu('s_lshl_b32', sT[0], sW, 6), valu('v_add_u32', T1, sT[0], T1),
          ds_write('ds_write_b32', T1, T0, AL), valu('v_mov_b32', T0, t + 1), salu('s_lshl_b32', sT[0], sW, 2), valu('v_mov_b32', T1, sT[0]),
          ds_write('ds_write_b32', T1, T0, FL))
        for g in range(4):
            B(self.r_reads(g, RB[0])); B(self.softmax_group(t, g, RB[0], raw=True))
            m = RB[0][1]
            for i in range(4): B(valu('v_sub_f32', m[i], m[i], MREF))
            B(self.softmax_fin(t, g, RB[0], track=False))
        B.wait_lg(); B.nop(4)
        B.line(f'    s_branch {back}')
        self.tail.append(B.text())

    def rare_rescale(self, t, lab, back):
        B = Asm(); B.label(lab)
        B.line('    s_waitcnt lgkmcnt(0)'); B.nop(16)
        Y0, Y1 = RB[0][1][0], RB[0][1][1]
        B(valu('v_and_b32', Y0, 31, vL), valu('v_lshlrev_b32', Y0, 2, Y0), valu('v_bfe_u32', Y1, vL, 4, 1), valu('v_lshlrev_b32', Y1, 2, Y1))
        for nu in range(2):
            B(ds_read('ds_read_b32', T2, Y0, AL + 128 * nu), ds_read('ds_read_b32', EMAX, Y1, FL + 8 * nu),
              valu('v_cmp_eq_u32', 'vcc', t + 1, EMAX), valu('v_cndmask_b32', T2, 1.0, T2))
            for ct in range(3):
                for i in range(16): B(valu('v_mul_f32', UACC[ct][nu][i], UACC[ct][nu][i], T2))
        B.nop(4)
        B.line(f'    s_branch {back}')
        self.tail.append(B.text())

    def stats(self, t, ring):
        rd = []; M = []; nq = 0
        for ks in range(12):
            x = ring[nq % 8]; nq += 1; c = ring[nq % 8]; nq += 1
            rd.append((len(M), ds_read('ds_read_b128', x, XO[ks & 3], (ks >> 2) * 256)))
            M.append(mfma16(GA, x, x, GA if ks else 0))
            rd.append((len(M), ds_read('ds_read_b128', c, CA[ks & 3], (ks >> 2) * 256)))
            M.append(mfma16(CX, c, x, CX if ks else 0))
        fill = {}
        self.place_reads(fill, rd, M, 5)
        Y = EMAX
        ex = [valu('v_cndmask_b32', T0, GA[0], GA[1], s(92, 2)), valu('v_cndmask_b32', T1, GA[2], GA[3], s(96, 2)),
              valu('v_add_f32', Y, CX[1], LSM[t]),
              valu('v_cndmask_b32', T0, T0, T1, s(94, 2)), valu('v_mul_f32', Y, sK[1], Y),
              valu('v_fma_f32', T0, CX[0], 2.0, T0), valu('v_add_f32', T0, T0, LSQ[t]),
              valu('v_mul_f32', T1, Y, Y), valu('v_fma_f32', T0, T0, sK[1], -T1), valu('v_max_f32', T0, 0, T0),
              valu('v_add_f32', T0, sK[2], T0), valu('v_rsq_f32', T0, T0),
              ds_write('ds_write_b32', RWR, Y, 256), ds_write('ds_write_b32', RWR, T0, 0)]
        return M, fill, ex

    def step(self, t, loads, sloads):
        A = self.A; o = self.o
        dbg = o.dump or ''
        fs = (lambda: self.stamp(fine=True)) if o.fine == t else (lambda: None)
        rd = []; M = []; nq = 0
        for g in range(4):
            for ks in range(12):
                x = RING[nq % 8]; nq += 1
                rd.append((len(M), ds_read('ds_read_b128', x, XA[ks & 3], g * 12288 + (ks >> 2) * 256)))
                M.append(mfma16(SACC[g], x, AFR[ks], SACC[g] if ks else 0))
        fill = {}
        self.place_reads(fill, rd, M, 6)
        fill[-1] += self.r_reads(0, RB[0]) + self.r_reads(1, RB[1])
        for g_ in sloads[:2]: fill[-1].extend(g_)
        spread_groups(fill, sloads[2:], 2, 4)
        for g in range(3):
            sm = self.softmax_group(t, g, RB[g & 1], first=(t == 0 and g == 0))
            if g < 2: sm += self.r_reads(g + 2, RB[g & 1])
            spread(fill, sm[:4], 12 * g + 9, 2)
            rest = sm[4:]
            per = -(-len(rest) // 10)
            spread(fill, rest, 12 * g + 13, per)
        fs()
        A(interleave(M, fill))
        fs()
        A(self.softmax_pk(t, 3, RB[1]))
        fs()
        lr = self.lab('rare'); lb = self.lab('back')
        A(valu('v_cmp_lt_f32', 'vcc', sK[3], EMAX))
        XTB = [[RING[3 * b + ct] for ct in range(3)] for b in range(2)]
        PB = [[RING[6], RING[7]], [RB[1][0], RB[1][1]]]
        ksteps = [('h', g) for g in range(4)] + ([('l', u) for u in range(2)] if t & 1 else [])
        def xreads(k, b):
            kind, g = ksteps[k]
            ad, off = (XT, g * 12288) if kind == 'h' else (LT, g * 24576)
            return [ds_read('ds_read_b64_tr_b16', XTB[b][ct][2 * r:2 * r + 2], ad[2 * ct + r], off) for ct in range(3) for r in range(2)]
        def preads(k, b):
            kind, g = ksteps[k]
            if kind == 'h': return [ds_read('ds_read_b128', PB[b][nu], PHR[g], nu * 4096) for nu in range(2)]
            return [ds_read('ds_read_b128', PB[b][nu], PLR[g], nu * 2048) for nu in range(2)]
        A(xreads(0, 0))
        A.line(f'    s_cbranch_vccnz {lr}')
        A.label(lb)
        self.rare_softmax(t, lr, lb)
        A(valu('v_add_f32', LSUM, LSUM, LST))
        if t & 1: A(self.pool_write())
        fs()
        A.barrier()
        fs()
        if dbg == f'step{t}':
            self.dump_lds(MISC, 16384); return
        upd = []
        if t < 3:
            for r in XA + XO: upd.append(valu('v_xor_b32', r, 0x10000, r))
            ck = [64, 96, 64][t]
            for r in CA: upd += [valu('v_xor_b32', r, ck, r), valu('v_add_u32', r, r, CD)]
        else: upd = self.epi_addr()
        FQ = RB[0][0]
        if t > 0: A(ds_read('ds_read_b128', FQ, FLA, 0))
        A(preads(0, 0))
        A(upd[:12]); upd = upd[12:]
        if t > 0:
            lr = self.lab('resc'); lb = self.lab('rback')
            A(valu('v_max3_u32', T2, FQ[0], FQ[1], FQ[2]), valu('v_max_u32', T2, T2, FQ[3]), readfirstlane(sT[1], T2),
              salu('s_cmp_eq_u32', sT[1], t + 1))
            A.line(f'    s_cbranch_scc1 {lr}')
            A.label(lb)
            self.rare_rescale(t, lr, lb)
        fs()
        M = []; fill = {}
        nk = len(ksteps)
        for k in range(nk):
            b = k & 1
            base = len(M)
            order = [(ct, nu) for ct in range(3) for nu in range(2)]
            for ct, nu in order:
                M.append(mfma32(UACC[ct][nu], XTB[b][ct], PB[b][nu], UACC[ct][nu] if (t or k) else 0))
            if k + 1 < nk:
                rr = preads(k + 1, b ^ 1) + xreads(k + 1, b ^ 1)
                spread(fill, rr, base, 2)
        n = len(M)
        spread(fill, upd, 4, 2)
        spread_groups(fill, loads, 1, 2)
        if t == 1: fill.setdefault(n - 10, []).append(self.wo_touch)
        if t == o.tab_step: fill.setdefault(3, []).append(self.table_load)
        if t < 3:
            spread(fill, [valu('v_xor_b32', r, 0x10000, r) for r in XT], 16, 3)
            last = {k - (n - 6): fill.pop(k) for k in list(fill) if k >= n - 6}
            A(interleave(M[:n - 6], fill))
            A.wait_vm(f'x{t+1}')
            SM, sfill, ex = self.stats(t + 1, [RING[0], RING[1], RING[2], RING[6], RING[7], SACC[0], SACC[1], SACC[2]])
            if t == 1:
                u2 = []
                for r in LT: u2 += [valu('v_xor_b32', r, 32, r), valu('v_add_u32', r, 1536, r)]
                spread(sfill, u2, 2, 1)
            A(interleave(SM, sfill))
            spread(last, ex, 1, 4)
            A(interleave(M[n - 6:], last))
        else:
            A(interleave(M, fill))
        fs()
        if t == o.tab_step: self.table_use()
        fs()
        if t < 3: A.barrier()
        fs()
        if t == o.tab_step: self.table_use2()
        self.stamp()

    def wo_touch(self, A):
        srd(A, SRD_X, PWO, 294912)
        A(valu('v_min_u32', T0, 17, vL), salu('s_mul_i32', sT[0], sW, 18), valu('v_add_u32', T0, sT[0], T0), valu('v_lshlrev_b32', T0, 7, T0),
          salu('s_lshr_b32', sT[0], sB, 3), salu('s_mul_i32', sT[0], sT[0], 9216),
          bload('buffer_load_dword', SLO[0][0], T0, SRD_X, sT[0], 0, tag='junk'))

    def table_load(self, A):
        TB = RB[0][1]
        A(valu('v_lshlrev_b32', TB[2], 2, vTID), salu('s_mov_b32', sSO, WS_TAB),
          bload('buffer_load_dword', TB[0], TB[2], SRD_WS, sSO, 0, 'sc1', tag='tb'))

    def table_use(self):
        A = self.A
        TB = RB[0][1]
        lr = self.lab('tb'); ls = self.lab('tbs'); lb = self.lab('tbb')
        A.label(lr)
        A(valu('v_xor_b32', T0, sTAG, TB[0]), valu('v_cmp_lt_u32', 'vcc', 15, T0), salu('s_cmp_lg_u64', 'vcc', 0))
        A.line(f'    s_cbranch_scc1 {ls}')
        A.label(lb)
        B = Asm(); B.label(ls); B.line('    s_sleep 2')
        B(salu('s_mov_b32', sSO, WS_TAB), bload('buffer_load_dword', TB[0], TB[2], SRD_WS, sSO, 0, 'sc1'))
        B.wait_vm(); self.spin_guard(B, lr); B.line(f'    s_branch {lb}')
        self.tail.append(B.text())
        A(valu('v_and_b32', TB[0], 15, TB[0]), valu('v_cmp_eq_u32', sM2, sXCC, TB[0]),
          valu('v_mov_b32', T1, 1), valu('v_lshlrev_b32', T1, TB[0], T1))
        for sh in ('row_ror:1', 'row_ror:2', 'row_ror:4', 'row_ror:8'):
            A(valu('v_or_b32_dpp', T1, T1, T1, mods=sh))
        self.allreduce_g(A, 'v_or_b32', T1, T2)
        A(salu('s_bcnt1_i32_b64', sT[0], sM2), valu('v_mov_b32', T0, sT[0]), salu('s_lshl_b32', sT[1], sW, 3), valu('v_mov_b32', T2, sT[1]))
        A(valu('v_mov_b32', TB[2], T0), valu('v_mov_b32', TB[3], T1), ds_write('ds_write_b64', T2, TB[2:4], CNT))

    def table_use2(self):
        A = self.A
        Q0 = RB[0][0]; Q1 = RB[0][1]
        A(valu('v_mov_b32', T0, 0), ds_read('ds_read_b128', Q0, T0, CNT), ds_read('ds_read_b128', Q1, T0, CNT + 16))
        A(readfirstlane(sT[0], Q0[0]), readfirstlane(sT[1], Q0[2]), readfirstlane(sT[2], Q1[0]), readfirstlane(sT[3], Q1[2]),
          valu('v_or3_b32', T1, Q0[1], Q0[3], Q1[1]), valu('v_or_b32', T1, T1, Q1[3]), readfirstlane(sGM, T1))
        A(salu('s_add_u32', sT[1], sT[1], sT[0]), salu('s_add_u32', sT[2], sT[2], sT[1]), salu('s_add_u32', sN, sT[3], sT[2]),
          salu('s_cmp_eq_u32', sW, 1), salu('s_cselect_b32', sP1, sT[0], 0), salu('s_cmp_eq_u32', sW, 2), salu('s_cselect_b32', sP1, sT[1], sP1),
          salu('s_cmp_eq_u32', sW, 3), salu('s_cselect_b32', sP1, sT[2], sP1))
        A(Ins(f'v_mbcnt_lo_u32_b32 {T0}, {sM2[0]}, 0', 'valu', regset([sM2]), regset([T0])),
          Ins(f'v_mbcnt_hi_u32_b32 {T0}, {sM2[1]}, {T0}', 'valu', regset([sM2, T0]), regset([T0])),
          valu('v_add_u32', T0, sP1, T0), valu('v_lshlrev_b32', T1, 2, T0), valu('v_add_u32', T1, MEMB, T1),
          valu('v_lshlrev_b32', T2, 2, vL), valu('v_add_u32', T2, DUM, T2), valu('v_cndmask_b32', T1, T2, T1, sM2),
          ds_write('ds_write_b32', T1, vTID, 0))
        A(valu('v_cmp_eq_u32', 'vcc', sB, vTID), valu('v_mov_b32', T1, CNT + 32), valu('v_cndmask_b32', T1, T2, T1),
          ds_write('ds_write_b32', T1, T0, 0))

    def flat_reg(self, dst):
        return [valu('v_and_b32', T0, 15, vL),
                valu('v_lshrrev_b32', T1, 2, T0), valu('v_lshrrev_b32', dst, 3, T0), valu('v_xor_b32', dst, T1, dst),
                valu('v_and_b32', dst, 1, dst), valu('v_lshlrev_b32', dst, 3, dst), valu('v_and_b32', T1, 1, T1), valu('v_or_b32', dst, dst, T1),
                valu('v_and_b32', T1, 1, T0), valu('v_lshl_or_b32', dst, T1, 2, dst), valu('v_and_b32', T1, 2, T0), valu('v_or_b32', dst, dst, T1)]

    def epi_addr(self):
        UW = XA + XO[:2]; UA = CA; F = XO[2]; RB_ = XO[3]
        L = self.flat_reg(F)
        L += [valu('v_and_b32', T0, 31, vL), valu('v_mul_u32_u24', RB_, 768, T0),
              valu('v_lshrrev_b32', T0, 5, vL), salu('s_mul_i32', sT[0], sW, 12), valu('v_add_u32', T0, sT[0], T0)]
        for i in range(6):
            L += [valu('v_add_u32', T1, 2 * i, T0), valu('v_xor_b32', T1, T1, F), valu('v_lshl_add_u32', UW[i], T1, 4, RB_)]
        L += [valu('v_lshrrev_b32', T1, 4, vL), valu('v_xor_b32', F, F, T1), valu('v_lshlrev_b32', F, 4, F),
              valu('v_and_b32', T0, 15, vL), valu('v_mul_u32_u24', T0, 768, T0), salu('s_mul_i32', sT[0], sW, 12288), valu('v_add_u32', T0, sT[0], T0)]
        for j in range(4): L += [valu('v_xor_b32', T1, 64 * j, F), valu('v_add_u32', UA[j], T0, T1)]
        t_ = PHW[0]
        L += [valu('v_mov_b32', t_, LSUM), permswap('v_permlane16_swap_b32', t_, LSUM), valu('v_add_f32', LSUM, LSUM, t_),
              valu('v_mov_b32', t_, LSUM), permswap('v_permlane32_swap_b32', t_, LSUM), valu('v_add_f32', LSUM, LSUM, t_),
              valu('v_and_b32', T0, 15, vL), valu('v_lshlrev_b32', T0, 2, T0), salu('s_lshl_b32', sT[0], sW, 6), valu('v_add_u32', T0, sT[0], T0),
              ds_write('ds_write_b32', T0, MREF, MLM), ds_write('ds_write_b32', T0, LSUM, MLL)]
        return L

    def tail_regs(self):
        t = type('T', (), {})()
        t.TG = v(240); t.NEG = v(241); t.MO = v(242); t.QV = v(243); t.QO = v(239)
        t.WO = [v(2 + 4 * j, 4) for j in range(6)]
        t.OF = [v(26 + i) for i in range(4)]; t.OB = [v(30), v(31)]; t.PI = v(32); t.GO = v(33); t.PB = v(34); t.GB = v(35)
        t.ACC = [v(40 + i) for i in range(6)]; t.MX = v(46); t.LX = v(47)
        t.MS = [v(136 + i) for i in range(4)]; t.LS = [v(140 + i) for i in range(4)]
        t.G = [v(176 + 4 * i, 4) for i in range(4)]
        t.WF = [v(88 + i) for i in range(36)]
        t.U = v(144, 2)
        return t

    def prepA(self, t):
        L = []
        for j in range(4):
            L += [salu('s_add_u32', sT[0], sC0, 8 * j), valu('v_add_u32', T0, sT[0], t.PI), valu('v_cmp_gt_u32', VAL[j], sN, T0),
                  valu('v_min_u32', T0, 255, T0), valu('v_lshlrev_b32', T0, 2, T0), ds_read('ds_read_b32', t.OF[j], T0, MEMB)]
        L += [valu('v_mov_b32', T1, 0x7ffffff0)]
        for j in range(4):
            L += [valu('v_lshl_add_u32', t.OF[j], t.OF[j], 14, t.GO), valu('v_cndmask_b32', t.OF[j], T1, t.OF[j], VAL[j])]
        L += [salu('s_lshl_b32', sSOA, sROW, 8), salu('s_add_u32', sSOA, sSOA, WS_MA)]
        return L

    def prepB(self, t, g0):
        L = [valu('v_mov_b32', T2, 0x7ffffff0)]
        for j in range(2):
            L += [valu('v_add_u32', T0, g0 + 4 * j, t.PB), valu('v_lshrrev_b32', T1, T0, sGM), valu('v_and_b32', T1, 1, T1),
                  valu('v_cmp_eq_u32', VALB[j], 1, T1), valu('v_lshl_add_u32', t.OB[j], T0, 8, t.GB),
                  valu('v_cndmask_b32', t.OB[j], T2, t.OB[j], VALB[j])]
        return L

    def epilogue(self):
        A = self.A; o = self.o
        t = self.tail_regs()
        UW = XA + XO[:2]; UA = CA
        PK = [RING[i] for i in range(4)]
        late = self.wv_loads(self.wv_next, 72)
        if self.wv_next == 0: self.check_flagV(A)
        n = 0
        for ct in range(3):
            for nu in range(2):
                for u in range(2):
                    P = PK[n % 4]; n += 1; x = UACC[ct][nu]
                    for e in range(4): A(valu('v_cvt_pk_bf16_f32', P[e], x[8 * u + 2 * e], x[8 * u + 2 * e + 1]))
                    A(ds_write('ds_write_b128', UW[2 * ct + u], P, nu * 24576))
                    if late and n % 2 == 0: A(late.pop(0))
        A.barrier()
        self.stamp()
        UQ = [v(160 + 4 * i, 4) for i in range(12)]
        D = [v(208 + 4 * j, 4) for j in range(6)]
        M4 = v(232, 4); L4 = v(244, 4); X4 = v(248, 4)
        for ks in range(12): A(ds_read('ds_read_b128', UQ[ks], UA[ks & 3], (ks >> 2) * 256))
        A(late)
        M = [mfma16(D[j], UQ[ks], self.wvq[6 * ks + j], D[j] if ks else 0) for ks in range(12) for j in range(6)]
        TG = t.TG
        ex = [valu('v_lshrrev_b32', t.PB, 4, vL), valu('v_lshlrev_b32', T0, 4, t.PB), salu('s_lshl_b32', sT[0], sW, 6), valu('v_add_u32', T0, sT[0], T0),
              ds_read('ds_read_b128', M4, T0, MLM), ds_read('ds_read_b128', L4, T0, MLL),
              valu('v_mov_b32', T0, 0), ds_read('ds_read_b32', T2, T0, CNT + 32)]
        S_ = Asm(); srd(S_, SRD_X, PWO, 294912); srd(S_, SRD_Y, PQ, 12288)
        def srds(A):
            srd(A, SRD_X, PWO, 294912); srd(A, SRD_Y, PQ, 12288); srd(A, SRD_Z, POUT, 12288)
        ex += [srds]
        ex += [valu('v_and_b32', t.GB, 15, vL), valu('v_mul_u32_u24', T0, 768, t.GB), valu('v_mul_u32_u24', T1, 12, t.PB),
               valu('v_add_u32', t.MO, T0, T1), salu('s_mul_i32', sSO, sW, 96 * 768), salu('s_and_b32', sT[0], sB, 15), salu('s_mul_i32', sT[0], sT[0], 48),
               salu('s_add_u32', sSO, sSO, sT[0]), salu('s_lshr_b32', sT[1], sB, 4), salu('s_mul_i32', sT[2], sT[1], 768), salu('s_add_u32', sP1, sT[2], sT[0]),
               salu('s_lshl_b32', sT[0], sW, 4), salu('s_add_u32', sT[0], sT[0], sT[1]), salu('s_lshl_b32', sSOB, sT[0], 12), salu('s_add_u32', sSOB, sSOB, WS_MB),
               readfirstlane(sRANK, T2), valu('v_lshlrev_b32', t.QO, 2, vL), valu('v_lshlrev_b32', t.GB, 4, t.GB)]
        wo = [[salu('s_add_u32', sSO2, sSO, j * 16 * 768), bload('buffer_load_dwordx3', R('v', t.WO[j].i, 3), t.MO, SRD_X, sSO2, 0, tag='wo')] for j in range(6)]
        wo.append([bload('buffer_load_dword', t.QV, t.QO, SRD_Y, sP1, 0, tag='wo')])
        ex2 = [valu('v_mov_b32', TG, sTAG), valu('v_lshlrev_b32', T1, 16, TG), valu('v_and_b32', TG, 0xffff0000, TG),
               salu('s_mov_b32', sM[0], 0xaaaaaaaa), salu('s_mov_b32', sM[1], 0xaaaaaaaa),
               valu('v_cndmask_b32', TG, T1, TG, sM), valu('v_mov_b32', t.NEG, -3.0e38)]
        for i in range(4):
            ex2 += [valu('v_cndmask_b32', X4[i], M4[i], L4[i], s(94, 2)), valu('v_lshrrev_b32', T1, 16, X4[i]), valu('v_and_b32', X4[i], 0xffff, X4[i]),
                    valu('v_cndmask_b32', X4[i], T1, X4[i], sM), valu('v_or_b32', X4[i], X4[i], TG)]
        ex2 += [salu('s_lshr_b32', sT[0], sW, 1), salu('s_mul_i32', sT[0], sT[0], sN), salu('s_add_u32', sROW, sRANK, sT[0]), salu('s_mov_b32', sC0, 0),
                valu('v_lshrrev_b32', t.PI, 3, vL), valu('v_and_b32', T0, 7, vL), valu('v_lshlrev_b32', t.GO, 4, T0),
                salu('s_and_b32', sT[0], sW, 1), salu('s_lshl_b32', sT[0], sT[0], 7), valu('v_add_u32', t.GO, sT[0], t.GO)]
        ex2 += self.prepA(t) + self.prepB(t, 0)
        fill = {}
        sl = spread(fill, ex, 0, 2)
        sl2 = spread_groups(fill, wo, sl + 1, 4)
        spread(fill, ex2, sl, 2)
        fill.setdefault(max(sl2, 66), []).extend([valu('v_lshl_add_u32', t.MO, t.PB, 10, t.GB), salu('s_lshl_b32', sSO, sB, 14), salu('s_lshl_b32', sT[0], sW, 12),
                                                  salu('s_add_u32', sSO, sSO, sT[0]), salu('s_add_u32', sSO, sSO, WS_MA)])
        A(interleave(M, fill))
        OQ = [v(160 + 4 * i, 4) for i in range(4)]
        for i in range(4):
            for e in range(3): A(valu('v_cvt_pk_bf16_f32', OQ[i][e], D[2 * e][i], D[2 * e + 1][i]))
            A(valu('v_mov_b32', OQ[i][3], X4[i]))
            A(bstore('buffer_store_dwordx4', OQ[i], t.MO, SRD_WS, sSO, i * 256, '', tag='ma'))
        self.stamp()
        self.tail_vm = [e for e in A.vm if e[0] in ('wo', 'ma')]

    def wavemax(self, A, x, with8):
        if with8: A(valu('v_max_f32_dpp', x, x, x, mods='row_ror:8'))
        self.allreduce_g(A, 'v_max_f32', x, T2)

    def merge(self, A, t, n, valid, first, with8):
        G, MS, LS, ACC, MX, LX = t.G, t.MS, t.LS, t.ACC, t.MX, t.LX
        for i in range(n):
            A(valu('v_and_b32', T0, 0xffff, G[i][3]))
            A(valu('v_mov_b32_dpp', MS[i], T0, mods='quad_perm:[0,0,0,0]'), valu('v_mov_b32_dpp', T1, T0, mods='quad_perm:[1,1,1,1]'),
              valu('v_mov_b32_dpp', LS[i], T0, mods='quad_perm:[2,2,2,2]'), valu('v_mov_b32_dpp', T2, T0, mods='quad_perm:[3,3,3,3]'),
              valu('v_lshl_or_b32', MS[i], MS[i], 16, T1), valu('v_lshl_or_b32', LS[i], LS[i], 16, T2),
              valu('v_cndmask_b32', MS[i], t.NEG, MS[i], valid[i]))
        W = MX if first else t.U[0]
        if n == 4: A(valu('v_max3_f32', W, MS[0], MS[1], MS[2]), valu('v_max_f32', W, W, MS[3]))
        else: A(valu('v_max_f32', W, MS[0], MS[1]))
        self.wavemax(A, W, with8)
        if not first:
            A(valu('v_max_f32', W, W, MX), valu('v_sub_f32', T1, MX, W), valu('v_exp_f32', T1, T1), valu('v_mov_b32', MX, W), valu('v_mul_f32', LX, LX, T1))
            for e in range(6): A(valu('v_mul_f32', ACC[e], ACC[e], T1))
        for i in range(n): A(valu('v_sub_f32', MS[i], MS[i], MX))
        for i in range(n): A(valu('v_exp_f32', MS[i], MS[i]))
        for i in range(n):
            z = first and i == 0
            A(valu('v_mul_f32', LX, MS[i], LS[i]) if z else valu('v_fma_f32', LX, MS[i], LS[i], LX))
            wp = R('v', MS[i].i & ~1, 2); ws_ = MS[i].i & 1
            for e in range(3):
                ap = R('v', ACC[2 * e].i, 2)
                A(valu('v_lshlrev_b32', t.U[0], 16, G[i][e]), valu('v_and_b32', t.U[1], 0xffff0000, G[i][e]))
                if z: A(Ins(f'v_pk_mul_f32 {ap}, {t.U}, {wp} op_sel:[0,{ws_}] op_sel_hi:[1,{ws_}]', 'valu', regset([t.U, wp]), regset([ap])))
                else: A(Ins(f'v_pk_fma_f32 {ap}, {t.U}, {wp}, {ap} op_sel:[0,{ws_},0] op_sel_hi:[1,{ws_},1]', 'valu', regset([t.U, wp, ap]), regset([ap])))

    def rs(self, A, t):
        a = t.ACC; L = t.LX
        A(valu('v_mov_b32', T0, L), permswap('v_permlane32_swap_b32', a[0], a[1]), permswap('v_permlane32_swap_b32', a[2], a[3]),
          permswap('v_permlane32_swap_b32', a[4], a[5]), permswap('v_permlane32_swap_b32', T0, L),
          valu('v_add_f32', a[0], a[0], a[1]), valu('v_add_f32', a[2], a[2], a[3]), valu('v_add_f32', a[4], a[4], a[5]), valu('v_add_f32', L, L, T0),
          permswap('v_permlane16_swap_b32', a[0], a[2]), permswap('v_permlane16_swap_b32', a[4], L),
          valu('v_add_f32', a[0], a[0], a[2]), valu('v_add_f32', a[4], a[4], L))

    def poll(self, A, t, n, offs, valid, soff, between=None):
        lp = self.lab('pl'); lc = self.lab('pc')
        def loads(B):
            for j in range(n): B(bload('buffer_load_dwordx4', t.G[j], offs[j], SRD_WS, soff, 0, 'sc1', tag='g'))
        loads(A)
        if between: between(A)
        A.label(lc)
        A.wait_vm()
        for j in range(n):
            A(valu('v_xor_b32', T0, t.G[j][3], t.TG), valu('v_cmp_lt_u32', 'vcc', 0xffff, T0),
              salu('s_and_b64', sM2 if j == 0 else sSV, 'vcc', valid[j]))
            if j: A(salu('s_or_b64', sM2, sM2, sSV))
        A.line(f'    s_cbranch_scc1 {lp}')
        ld = self.lab('pd'); A.label(ld)
        B = Asm(); B.label(lp)
        B(salu('s_add_u32', sCNT, sCNT, 1), salu('s_cmp_ge_u32', sCNT, 400000)); B.line(f'    s_cbranch_scc1 {ld}')
        loads(B); B.line(f'    s_branch {lc}')
        self.tail.append(B.text())

    def tail_phase(self):
        A = self.A; o = self.o
        t = self.tail_regs()
        A.reset_state(self.tail_vm, []); A.nop(2)
        def unpack(B):
            for j in range(6):
                for e in range(3):
                    B(valu('v_lshlrev_b32', t.WF[6 * j + 2 * e], 16, t.WO[j][e]), valu('v_and_b32', t.WF[6 * j + 2 * e + 1], 0xffff0000, t.WO[j][e]))
        A(salu('s_cmp_ge_u32', sROW, 64)); A.line('    s_cbranch_scc1 L_norow')
        B = Asm(); B.label('L_norow'); B.line('    s_waitcnt vmcnt(0)'); unpack(B); B.line('    s_branch L_stageB'); self.tail.append(B.text())
        self.poll(A, t, 4, t.OF, VAL, sSOA, unpack)
        self.merge(A, t, 4, VAL, True, True)
        A(salu('s_cmp_gt_u32', sN, 32)); A.line('    s_cbranch_scc1 L_more')
        A.label('L_rowdone')
        self.rs(A, t)
        a = t.ACC; OQ = t.G[0]
        A(valu('v_add_f32_dpp', a[0], a[0], a[0], mods='row_ror:8'), valu('v_add_f32_dpp', a[4], a[4], a[4], mods='row_ror:8'),
          valu('v_mov_b32', a[1], a[0]), valu('v_mov_b32', a[5], a[4]),
          salu('s_lshl_b32', sSO, sROW, 12), salu('s_lshl_b32', sT[0], sXCC, 8), salu('s_add_u32', sSO, sSO, sT[0]), salu('s_add_u32', sSO, sSO, WS_MB),
          permswap('v_permlane32_swap_b32', a[1], a[0]), permswap('v_permlane32_swap_b32', a[5], a[4]),
          valu('v_cvt_pk_bf16_f32', OQ[1], a[1], a[0]), valu('v_cvt_pk_bf16_f32', OQ[2], a[5], a[4]), valu('v_mov_b32', a[3], a[5]),
          valu('v_mov_b32', OQ[0], OQ[1]), permswap('v_permlane16_swap_b32', a[3], a[5]), permswap('v_permlane16_swap_b32', OQ[0], OQ[1]),
          valu('v_cndmask_b32', T0, t.MX, a[5], s(94, 2)), valu('v_lshrrev_b32', T1, 16, T0), valu('v_and_b32', T0, 0xffff, T0),
          valu('v_cndmask_b32', T0, T1, T0, sM), valu('v_or_b32', OQ[3], T0, t.TG), salu('s_mov_b64', 'exec', 0xff))
        A(bstore('buffer_store_dwordx4', OQ, t.GO, SRD_WS, sSO, 0, 'sc1'))
        A(salu('s_mov_b64', 'exec', -1), salu('s_lshl_b32', sT[0], sN, 1), salu('s_add_u32', sROW, sROW, sT[0]), salu('s_cmp_lt_u32', sROW, 64))
        A.line('    s_cbranch_scc1 L_nextrow')
        save = self.A
        B = Asm(); self.A = B
        B.label('L_nextrow'); B.line('    s_waitcnt vmcnt(0)'); B.nop(4)
        B(salu('s_mov_b32', sC0, 0)); B(self.prepA(t)); self.poll(B, t, 4, t.OF, VAL, sSOA); self.merge(B, t, 4, VAL, True, True)
        B.label('L_more'); B.nop(4)
        B(salu('s_add_u32', sC0, sC0, 32), salu('s_cmp_ge_u32', sC0, sN)); B.line('    s_cbranch_scc1 L_rowdone')
        B(self.prepA(t)); self.poll(B, t, 4, t.OF, VAL, sSOA); self.merge(B, t, 4, VAL, False, True)
        B.line('    s_branch L_more')
        self.tail.append(B.text()); self.A = save
        A.label('L_stageB')
        self.stamp()
        self.poll(A, t, 2, t.OB, VALB, sSOB)
        self.merge(A, t, 2, VALB, True, False)
        A(salu('s_cmp_ge_u32', sGM, 256)); A.line('    s_cbranch_scc1 L_moreB')
        A.label('L_fin')
        B = Asm(); B.label('L_moreB'); B.nop(4)
        B(self.prepB(t, 8)); self.poll(B, t, 2, t.OB, VALB, sSOB); self.merge(B, t, 2, VALB, False, False); B.nop(4)
        B.line('    s_branch L_fin'); self.tail.append(B.text())
        self.rs(A, t)
        L = t.LX
        A(valu('v_mov_b32', a[1], a[0]), valu('v_mov_b32', a[5], a[4]),
          valu('v_mul_u32_u24', T0, 24, t.PB), salu('s_mul_i32', sT[0], sW, 96), salu('s_add_u32', sT[0], sT[0], OUTR),
          permswap('v_permlane32_swap_b32', a[1], a[0]), permswap('v_permlane32_swap_b32', a[5], a[4]),
          valu('v_mov_b32', a[2], a[1]), valu('v_mov_b32', a[3], a[0]), valu('v_mov_b32', L, a[5]), valu('v_mov_b32', T2, a[4]),
          permswap('v_permlane16_swap_b32', a[1], a[2]), permswap('v_permlane16_swap_b32', a[0], a[3]),
          permswap('v_permlane16_swap_b32', a[5], L), permswap('v_permlane16_swap_b32', a[4], T2),
          valu('v_rcp_f32', L, L), valu('v_add_u32', T0, sT[0], T0), valu('v_mov_b32', T1, DUM), valu('v_cmp_eq_u32', 'vcc', 0, t.GB))
        C = [a[1], a[0], a[2], a[3], a[5], a[4]]
        for e in range(6): A(valu('v_mul_f32', C[e], C[e], L))
        A(valu('v_cndmask_b32', T0, T1, T0))
        for e in range(3):
            A(valu('v_cvt_pk_bf16_f32', T1, C[2 * e], C[2 * e + 1]), valu('v_lshlrev_b32', C[2 * e], 16, T1),
              valu('v_and_b32', C[2 * e + 1], 0xffff0000, T1))
        O = [v(136 + i) for i in range(6)]
        for j in range(6):
            cp = R('v', C[j].i & ~1, 2); cs = C[j].i & 1
            for n in range(3):
                op_ = R('v', O[2 * n].i, 2); wp = R('v', t.WF[6 * j + 2 * n].i, 2)
                if j == 0: A(Ins(f'v_pk_mul_f32 {op_}, {wp}, {cp} op_sel:[0,{cs}] op_sel_hi:[1,{cs}]', 'valu', regset([wp, cp]), regset([op_])))
                else: A(Ins(f'v_pk_fma_f32 {op_}, {wp}, {cp}, {op_} op_sel:[0,{cs},0] op_sel_hi:[1,{cs},1]', 'valu', regset([wp, cp, op_]), regset([op_])))
        for sh in ('row_ror:1', 'row_ror:2', 'row_ror:4', 'row_ror:8'):
            for n in range(6): A(valu('v_add_f32_dpp', O[n], O[n], O[n], mods=sh))
        for n in range(3): A(ds_write('ds_write_b64', T0, R('v', O[2 * n].i, 2), 8 * n))
        A(valu('v_min_u32', T0, 11, vL), valu('v_lshlrev_b32', T0, 3, T0), valu('v_lshlrev_b32', a[0], 16, t.QV), valu('v_and_b32', a[1], 0xffff0000, t.QV))
        A.barrier()
        A(salu('s_cmp_lg_u32', sW, 0)); A.line('    s_cbranch_scc1 L_out')
        P = [v(160 + 2 * i, 2) for i in range(4)]
        for w in range(4): A(ds_read('ds_read_b64', P[w], T0, OUTR + 96 * w))
        A(Ins(f'v_pk_add_f32 {P[0]}, {P[0]}, {P[1]}', 'valu', regset([P[0], P[1]]), regset([P[0]])),
          Ins(f'v_pk_add_f32 {P[2]}, {P[2]}, {P[3]}', 'valu', regset([P[2], P[3]]), regset([P[2]])),
          Ins(f'v_pk_add_f32 {P[0]}, {P[0]}, {P[2]}', 'valu', regset([P[0], P[2]]), regset([P[0]])))
        A(valu('v_cvt_pk_bf16_f32', T1, P[0][0], P[0][1]), valu('v_lshlrev_b32', P[0][0], 16, T1), valu('v_and_b32', P[0][1], 0xffff0000, T1),
          valu('v_add_f32', P[0][0], P[0][0], a[0]), valu('v_add_f32', P[0][1], P[0][1], a[1]), salu('s_mov_b64', 'exec', 0xfff),
          valu('v_cvt_pk_bf16_f32', T0, P[0][0], P[0][1]))
        A(bstore('buffer_store_dword', T0, t.QO, SRD_Z, sP1, 0))
        A(salu('s_mov_b64', 'exec', -1))
        A.label('L_out')
        self.stamp()
        self.stamp_out()
        A.label('L_end')
        A.line('    s_endpgm')

    def build(self):
        self.prologue()
        A = self.A
        body = A.out
        txt = '\n'.join(body) + '\n' + ''.join(self.tail) + 'L_codeend:\n    s_endpgm\n'
        ninstr = sum(1 for l in txt.split('\n') if l.startswith('    ') and not l.strip().startswith(';'))
        self.ninstr = ninstr
        pad = f'.fill {self.o.pad // 4}, 4, 0xbf810000\n' if self.o.pad else ''
        hdr = open('standalone__detection_seg_mask2former__vision.s.ref').read().split('; Override launch')[0]
        s_ = hdr + f'; @launch grid=(256,1,1) block=(256,1,1) lds={LDS_BYTES}\n' + '.amdgcn_target "amdgcn-amd-amdhsa--gfx950"\n.text\n' + txt + pad
        s_ += f'''.section .rodata,"a"
.p2align 6
.amdhsa_kernel {KN}
  .amdhsa_next_free_vgpr 512
  .amdhsa_next_free_sgpr 102
  .amdhsa_accum_offset 256
  .amdhsa_group_segment_fixed_size 0
  .amdhsa_kernarg_size 96
  .amdhsa_user_sgpr_count 2
  .amdhsa_user_sgpr_kernarg_segment_ptr 1
  .amdhsa_system_sgpr_workgroup_id_x 1
  .amdhsa_float_denorm_mode_32 3
.end_amdhsa_kernel
'''
        return s_


def main():
    ap = argparse.ArgumentParser()
    ap.add_argument('-o', default='k.s')
    ap.add_argument('--dump', default='')
    ap.add_argument('--stamps', action='store_true')
    ap.add_argument('--cyc', action='store_true')
    ap.add_argument('--fine', type=int, default=-1)
    ap.add_argument('--probe', type=int, default=-1)
    ap.add_argument('--probe-wg', type=int, default=16)
    ap.add_argument('--stampw', type=int, default=0)
    ap.add_argument('--npre-late', type=int, default=2)
    ap.add_argument('--npre-prod', type=int, default=0)
    ap.add_argument('--x1-slot', type=int, default=38)
    ap.add_argument('--pv-late', type=int, default=0)
    ap.add_argument('--kflag', type=int, default=4)
    ap.add_argument('--plan-e', type=eval, default=[(0,0),(0,16),(0,12),(14,18)])
    ap.add_argument('--plan-l', type=eval, default=[(0,12),(0,16),(0,12),(12,18)])
    ap.add_argument('--tab-step', type=int, default=2)
    ap.add_argument('--fakegrp', type=int, default=0)
    ap.add_argument('--pf-lines', type=int, default=17)
    ap.add_argument('--pad', type=int, default=0)
    o = ap.parse_args()
    g = Gen(o)
    t = g.build()
    open(o.o, 'w').write(t)
    print(f'{o.o}: {g.ninstr} instrs, {g.A.nops} nops', file=sys.stderr)

if __name__ == '__main__':
    main()
```

```python
import sys, math, argparse
from asmlib import *

KN = 'standalone__detection_seg_mask2former__vision_kernel'
LOG2E = 1.4426950408889634
S1 = 96 ** -0.5 * LOG2E
S2 = 384 ** -0.5 * LOG2E
THR = 30.0

S0, MISC, SL1, R0 = 0, 49152, 65536, 114688
PH = MISC; PL = PH + 8192; RR = PL + 4096; RM = RR + 256; ONES = RM + 256; AL = ONES + 768
FL = AL + 256; CNT = FL + 64; DUM = FL + 256; MEMB = DUM + 512
MLM = RR; MLL = RM; OUTR = ONES
STAMP = MISC + 16128
assert MEMB + 1024 <= STAMP and ONES % 256 == 0
LDS_BYTES = 163840
WS_A = 0; WS_V = 65536; WS_TAB = 0x60000; WS_MA = 0x100000; WS_MB = 0x500000; WS_DUMP = 0x1000000; WS_STAMP = 0x8000000
WS_BYTES = 268435456
DB_A = 32; DB_V = 36; DB_EP = 37

sW = s(3); sB = s(2)
sT = [s(i) for i in range(4, 8)]
SRD_HI = s(8, 4); SRD_LO = s(12, 4); SRD_WL = s(16, 4); SRD_WS = s(20, 4); SRD_DB = s(24, 4)
SRD_X = s(28, 4); SRD_Y = s(32, 4); SRD_Z = s(36, 4)
sHI = s(40)
sSO = s(41); sSO2 = s(42)
sWB = s(43)
sVF = s(0); sXB = s(101); sWS = s(98); sROW = s(99); sSOA = s(80); sSOB = s(81); sC0 = s(100)
VAL = [s(66 + 2 * i, 2) for i in range(4)]; VALB = [s(74, 2), s(76, 2)]
sEP = s(44); sTAG = s(45); sXCC = s(46); sN = s(47); sRANK = s(48); sGM = s(49)
sM = s(50, 2); sM2 = s(52, 2); sSV = s(54, 2); sCNT = s(56); sROLE = s(57); sP0 = s(58); sP1 = s(59)
sST = 60
PQ, PHI, PLO, PWL, PWQ, PWK, PWV, PWO = [s(64 + 2 * i, 2) for i in range(8)]
PWM, POUT, PDB, PWS = [s(80 + 2 * i, 2) for i in range(4)]
sK = [s(i) for i in range(88, 100)]

vTID = v(0); vL = v(1)
XG = [v(2 + i) for i in range(6)]
XA = [v(8 + i) for i in range(4)]
XO = [v(12 + i) for i in range(4)]
XT = [v(16 + i) for i in range(6)]
XW = v(22); FLA = XW
CA = [v(23 + i) for i in range(4)]
PHW = [v(27 + i) for i in range(4)]
PHR = [v(31 + i) for i in range(4)]
PLW = v(35); CD = v(36); T0 = v(37); T1 = v(38)
PLR = [v(39), v(40)]
RRD = v(41); RWR = v(42)
LT = [v(43 + i) for i in range(6)]
LIN = v(49)
SLO = [v(50 + 4 * i, 4) for i in range(4)]
LSQ = v(66, 4); LSM = v(70, 4)
MREF = v(74); LSUM = v(75); SUMA = v(76); EMAX = v(77)
POOL = [[v(78 + 2 * g), v(79 + 2 * g)] for g in range(4)]
LST = v(86); T2 = v(87)
RING = [v(88 + 4 * i, 4) for i in range(8)]
SACC = [v(120 + 4 * i, 4) for i in range(4)]
GA = v(136, 4); CX = v(140, 4)
RB = [(v(144, 4), v(148, 4)), (v(152, 4), v(156, 4))]
UACC = [[v(160 + 16 * (2 * ct + nu), 16) for nu in range(2)] for ct in range(3)]
LACC = [[v(160 + 4 * (6 * mu + j), 4) for j in range(6)] for mu in range(4)]
WF = [[v(56 + 24 * b + 4 * j, 4) for j in range(6)] for b in range(2)]
FF = [[v(104 + 16 * b + 4 * m, 4) for m in range(4)] for b in range(2)]
FA = [v(144 + i) for i in range(4)]
WD = [v(148 + i) for i in range(3)]
WT = [v(136 + i) for i in range(6)]
FDB = v(153)
AFR = [a(4 * i, 4) for i in range(12)]
STG = [[a(48 + 48 * b + 4 * i, 4) for i in range(12)] for b in range(4)]
SPARE = [a(240 + 4 * i, 4) for i in range(4)]


def flat(rho):
    b0, b1, b2, b3 = rho & 1, (rho >> 1) & 1, (rho >> 2) & 1, (rho >> 3) & 1
    return 8 * (b2 ^ b3) + 4 * b0 + 2 * b1 + b2


def srd(A, dst, ptr, nbytes):
    A(salu('s_mov_b32', dst[0], ptr[0]), salu('s_and_b32', dst[1], ptr[1], 0xffff),
      salu('s_mov_b32', dst[2], nbytes), salu('s_mov_b32', dst[3], 0x20000))


class Gen:
    def __init__(self, o):
        self.o = o
        self.A = Asm()
        self.tail = []
        self.uid = 0
        self.nstamp = 0

    def lab(self, p):
        self.uid += 1
        return f'L_{p}_{self.uid}'

    def stamp(self, A=None, fine=False):
        if self.o.probe >= 0 and not fine:
            A = A or self.A
            i = self.nstamp; self.nstamp += 1
            if i == 0: A.line('    s_memrealtime s[60:61]\n    s_waitcnt lgkmcnt(0)'); A.lg = []
            if i == self.o.probe: A.line('    s_memrealtime s[62:63]\n    s_waitcnt lgkmcnt(0)'); A.lg = []
            return
        if not self.o.stamps: return
        if (self.o.fine >= 0) != fine and self.nstamp > 0: return
        A = A or self.A
        i = self.nstamp; self.nstamp += 1
        assert i < 16
        A.line('    s_memtime s[60:61]' if self.o.cyc else '    s_memrealtime s[60:61]')
        A.line(f'    s_lshl_b32 s62, s3, 6')
        A.line(f'    s_waitcnt lgkmcnt(0)'); A.lg = []
        X2 = v(154) if self.o.fine == 11 else T2
        A.line(f'    v_mov_b32 {T1}, s60')
        A.line(f'    v_mov_b32 {X2}, s62')
        A.line(f'    ds_write_b32 {X2}, {T1} offset:{STAMP + 4 * i}')
        A.line(f'    s_waitcnt lgkmcnt(0)')
        A.clock += 7

    def stamp_out(self):
        if self.o.probe >= 0:
            A = self.A
            A.line(f"""    s_cmp_ge_u32 s2, {self.o.probe_wg + self.o.probe_n}
    s_cbranch_scc1 L_end
    s_cmp_lt_u32 s2, {self.o.probe_wg}
    s_cbranch_scc1 L_end
    s_cmp_lg_u32 s3, 0
    s_cbranch_scc1 L_end
    s_sub_u32 s62, s62, s60
    s_mul_i32 s62, s62, {self.o.probe_k}
    s_add_u32 s62, s62, 20000
    s_sleep 127
    s_sleep 127
    s_sleep 127
    {'buffer_wbl2 sc1' if self.o.probe_wb else 's_nop 0'}
    s_waitcnt vmcnt(0)
L_probe:
    s_sleep 1
    s_memrealtime s[4:5]
    s_waitcnt lgkmcnt(0)
    s_sub_u32 s4, s4, s60
    s_cmp_lt_u32 s4, s62
    s_cbranch_scc1 L_probe""")
            return
        if not self.o.stamps: return
        A = self.A
        l = self.lab('nst')
        A.wait_vm()
        A(salu('s_cmp_lg_u32', sW, self.o.stampw)); A.line(f'    s_cbranch_scc1 {l}')
        A(valu('v_lshlrev_b32', T0, 2, vL), salu('s_lshl_b32', sT[0], sW, 6), valu('v_add_u32', T0, sT[0], T0), ds_read('ds_read_b32', v(160), T0, STAMP),
          valu('v_mov_b32', v(161), 0), valu('v_lshlrev_b32', T0, 3, vL),
          salu('s_lshl_b32', sT[0], sB, 7), salu('s_add_u32', sT[0], sT[0], WS_STAMP), salu('s_mov_b64', 'exec', 0xffff))
        A(bstore('buffer_store_dwordx2', v(160, 2), T0, SRD_WS, sT[0]))
        A(salu('s_mov_b64', 'exec', -1))
        A.wait_vm()
        A.label(l)

    def dump_lds(self, base, nbytes):
        A = self.A
        A.wait_vm(); A.barrier()
        A(valu('v_lshlrev_b32', T0, 4, vTID), salu('s_mul_i32', sT[0], sB, nbytes), salu('s_add_u32', sT[0], sT[0], WS_DUMP))
        A(valu('v_add_u32', T1, base, T0))
        for i in range(nbytes // 4096):
            A(ds_read('ds_read_b128', RING[0], T1, 0), bstore('buffer_store_dwordx4', RING[0], T0, SRD_WS, sT[0]),
              salu('s_add_u32', sT[0], sT[0], 4096), valu('v_add_u32', T1, 4096, T1))
            A.wait_vm()
        A.line('    s_endpgm')

    def dump_regs(self, regs):
        A = self.A
        A.wait_vm(); A.wait_lg(); A.flush_hazards()
        n = len(regs)
        A(valu('v_lshlrev_b32', T0, 2, vTID), salu('s_mul_i32', sT[0], sB, n * 1024), salu('s_add_u32', sT[0], sT[0], WS_DUMP))
        for r in regs:
            if r.k == 'a':
                A(valu('v_accvgpr_read_b32', T1, r)); r = T1
            A(bstore('buffer_store_dword', r, T0, SRD_WS, sT[0]), salu('s_add_u32', sT[0], sT[0], 1024))
            A.wait_vm()
        A.line('    s_endpgm')

    def allreduce_g(self, A, op, x, t):
        A(valu('v_mov_b32', t, x), permswap('v_permlane16_swap_b32', t, x), valu(op, x, x, t),
          valu('v_mov_b32', t, x), permswap('v_permlane32_swap_b32', t, x), valu(op, x, x, t))

    def spin_guard(self, A, label_retry):
        A(salu('s_add_u32', sCNT, sCNT, 1), salu('s_cmp_lt_u32', sCNT, 400000))
        A.line(f'    s_cbranch_scc1 {label_retry}')

    def prologue(self):
        A = self.A; o = self.o
        A.line(f'.globl {KN}\n.p2align 8\n.type {KN},@function\n{KN}:')
        A(salu('s_cmp_ge_u32', sB, 256)); A.line('    s_cbranch_scc1 L_end')
        A(smem('s_load_dwordx16', s(64, 16), s(0, 2), 0), smem('s_load_dwordx8', s(80, 8), s(0, 2), 64))
        A(valu('v_lshrrev_b32', T0, 6, vTID), valu('v_and_b32', vL, 63, vTID), readfirstlane(sW, T0),
          valu('v_lshlrev_b32', LIN, 4, vL), salu('s_mov_b32', sCNT, 0))
        A.nop(1)
        self.stamp()
        l = self.lab('cp')
        A(salu('s_cmp_lg_u32', sW, 2)); A.line(f'    s_cbranch_scc1 {l}')
        A.line('    s_getpc_b64 s[4:5]\nL_pc:')
        A.line(f'    s_lshr_b32 s6, s2, 3\n    s_mul_i32 s6, s6, {o.pf_lines}\n    v_min_u32 v56, {o.pf_lines - 1}, v1\n    v_add_u32 v56, s6, v56')
        A.line('    v_lshlrev_b32 v56, 7, v56\n    v_min_u32 v56, L_codeend-L_pc, v56\n    v_mov_b32 v57, s5\n    v_add_co_u32 v56, vcc, s4, v56')
        A.line('    s_nop 1\n    v_addc_co_u32 v57, vcc, 0, v57, vcc\n    global_load_dword v157, v[56:57], off')
        A.label(l)
        A.vm.append(('junk', v(157).regs()))
        self.role()

    def touch(self, waves, nlines, srd_, sbase, reg):
        A = self.A
        l = self.lab('tc')
        w0, w1 = waves
        if w0 == 0:
            A(valu('v_min_u32', T0, nlines - 1, vTID), salu('s_cmp_ge_u32', sW, w1))
        else:
            A(valu('v_min_u32', T0, nlines - 1, vL), salu('s_cmp_lg_u32', sW, w0))
        A(valu('v_lshlrev_b32', T0, 7, T0))
        A.line(f'    s_cbranch_scc1 {l}')
        A.line(f'    buffer_load_dword {reg}, {T0}, {srd_}, {sbase} offen')
        A.label(l)
        A.vm.append(('junk', reg.regs())); A.clock += 1

    def w_touch(self, reg=159):
        A = self.A
        A(salu('s_lshr_b32', sT[0], sB, 3), salu('s_mul_i32', sT[0], sT[0], 9216))
        self.touch((0, 2), 72, SRD_WL, sT[0], v(reg))

    def rows_dma(self, srd_, rows, ssrc, slds, flags, tag):
        A = self.A
        A(salu('s_mov_b32', 'exec_hi', 0xffff))
        for (so, lo, f) in rows:
            A(salu('s_add_u32', 'm0', slds, lo), salu('s_add_u32', sSO, ssrc, so))
            if isinstance(f, R) or f: A(valu('v_xor_b32', T0, f if isinstance(f, R) else 16 * f, LIN))
            A(bload_lds(T0 if (isinstance(f, R) or f) else LIN, srd_, sSO, 0, flags, tag=tag))
        A(salu('s_mov_b32', 'exec_hi', -1))

    def flo_dma(self):
        A = self.A
        A(salu('s_mul_i32', sT[2], sB, 49152), salu('s_mul_i32', sT[0], sW, 3072), salu('s_add_u32', sT[2], sT[2], sT[0]),
          salu('s_mul_i32', sT[1], sW, 12288), salu('s_add_u32', sT[1], sT[1], R0))
        rows = [((16 * (r & 3) + (r >> 2)) * 768, r * 768, flat(r)) for r in range(16)]
        self.rows_dma(SRD_LO, rows, sT[2], sT[1], 'nt', 'flo')

    def common_srds(self):
        A = self.A
        srd(A, SRD_HI, PHI, 50331648); srd(A, SRD_WS, PWS, WS_BYTES); srd(A, SRD_DB, PDB, 256)

    def addr_setup1(self):
        A = self.A
        RH = v(60)
        A(salu('s_mov_b32', sK[0], 196608))
        for b in range(3):
            A(valu('v_add_u32', T0, 64 * b, vL), valu('v_mul_u32_u24', T1, 1366, T0), valu('v_lshrrev_b32', RH, 16, T1),
              valu('v_mul_u32_u24', T1, 48, RH), valu('v_sub_u32', T0, T0, T1),
              valu('v_lshlrev_b32', T1, 2, RH), valu('v_xor_b32', T0, T0, T1), valu('v_lshlrev_b32', T0, 4, T0),
              valu('v_and_b32', T1, 1, RH), valu('v_mul_u32_u24', T1, 768, T1), valu('v_add_u32', T0, T0, T1),
              valu('v_lshrrev_b32', T1, 1, RH), valu('v_mul_lo_u32', T1, T1, sK[0]), valu('v_add_u32', XG[b], T0, T1))
            if b: A(valu('v_subrev_u32', XG[b], 1024 * b, XG[b]))
            A(valu('v_xor_b32', XG[3 + b], 32, XG[b]))
        A(salu('s_lshr_b32', sT[0], sB, 1), salu('s_mul_i32', sHI, sT[0], 393216), salu('s_and_b32', sT[0], sB, 1),
          salu('s_mul_i32', sT[0], sT[0], 98304), salu('s_add_u32', sHI, sHI, sT[0]), salu('s_mul_i32', sT[0], sW, 6144),
          salu('s_add_u32', sHI, sHI, sT[0]))

    def wd_setup(self, rowstride, dst, colw):
        A = self.A
        for b in range(3):
            A(valu('v_add_u32', T0, 64 * b, vL), valu('v_mul_u32_u24', T1, 5462, T0), valu('v_lshrrev_b32', T1, 16, T1),
              valu('v_mul_u32_u24', T2, 12, T1), valu('v_sub_u32', T0, T0, T2),
              valu('v_lshrrev_b32', T2, 2, T1), valu('v_and_b32', T2, 2, T2), valu('v_xor_b32', T0, T0, T2),
              valu('v_lshlrev_b32', T0, 4, T0), valu('v_mul_u32_u24', T1, rowstride, T1), valu('v_add_u32', dst[b], T0, T1))
        if colw:
            A(salu('s_mul_i32', sT[0], sW, 192))
            for b in range(3): A(valu('v_add_u32', dst[b], sT[0], dst[b]))

    def wtr_setup(self, wa, wb):
        A = self.A
        A(valu('v_lshrrev_b32', T0, 4, vL), valu('v_lshlrev_b32', T1, 3, T0), valu('v_bfe_u32', T2, vL, 2, 2),
          valu('v_add_u32', T1, T1, T2), valu('v_mul_u32_u24', T1, 192, T1), valu('v_and_b32', T2, 3, vL),
          valu('v_lshl_add_u32', T1, T2, 3, T1), valu('v_and_b32', T0, 1, T0), valu('v_lshlrev_b32', T0, 5, T0),
          valu('v_add_u32', wa, T1, T0), valu('v_sub_u32', wb, T1, T0))

    def fa_setup(self, dst, base):
        A = self.A
        A(valu('v_and_b32', T0, 15, vL),
          valu('v_lshrrev_b32', T1, 2, T0), valu('v_lshrrev_b32', T2, 3, T0), valu('v_xor_b32', T2, T1, T2),
          valu('v_and_b32', T2, 1, T2), valu('v_lshlrev_b32', T2, 3, T2), valu('v_and_b32', T1, 1, T1), valu('v_or_b32', T2, T2, T1),
          valu('v_and_b32', T1, 1, T0), valu('v_lshl_or_b32', T2, T1, 2, T2), valu('v_and_b32', T1, 2, T0), valu('v_or_b32', T2, T2, T1),
          valu('v_lshrrev_b32', T1, 4, vL), valu('v_xor_b32', T2, T2, T1), valu('v_lshlrev_b32', T2, 4, T2),
          valu('v_mul_u32_u24', T0, 768, T0), valu('v_add_u32', T0, base, T0))
        for j in range(4):
            A(valu('v_xor_b32', T1, 64 * j, T2), valu('v_add_u32', dst[j], T0, T1))

    def x_loads(self, t, buf):
        L = []
        for g in range(4):
            for b in range(3):
                G = [salu('s_add_u32', sSO2, sHI, t * 16 * 1536 + g * 1536)] if b == 0 else []
                G.append(bload('buffer_load_dwordx4', STG[buf][3 * g + b], XG[3 * (g & 1) + b], SRD_HI, sSO2, 1024 * b, 'nt', tag=f'x{t}'))
                L.append(G)
        return L

    def x_dma(self, t):
        L = []
        for g in range(4):
            for b in range(3):
                G = [salu('s_add_u32', 'm0', sXB, (t & 1) * 65536 + 3 * g * 1024), salu('s_add_u32', sSO2, sHI, t * 16 * 1536 + g * 1536)] if b == 0 else []
                G.append(bload_lds(XG[3 * (g & 1) + b], SRD_HI, sSO2, 1024 * b, 'nt', tag=f'x{t}'))
                L.append(G)
        return L

    def w_dma(self, ks):
        L = []
        pc = ks % 4
        for i in range(6):
            g = []
            if i % 3 == 0:
                g.append(salu('s_add_u32', 'm0', sWB, (pc & 1) * 24576 + (pc >> 1) * 65536 + i * 1024))
                g.append(salu('s_add_u32', sSO, sWS, ks * 24576 + (i // 3) * 3072))
            g.append(bload_lds(WD[i % 3], SRD_WL, sSO, 1024 * (i % 3), '', tag=f'w{ks}'))
            L.append(g)
        return L

    def w_setup(self):
        A = self.A
        RH = v(60); FW = v(61); RW = v(62)
        A(salu('s_mul_i32', sWB, sW, 6144), salu('s_mov_b32', sWS, sWB), salu('s_and_b32', sT[0], sW, 1), salu('s_lshl_b32', sT[0], sT[0], 3))
        for b in range(3):
            A(valu('v_add_u32', T0, 64 * b, vL), valu('v_mul_u32_u24', T1, 1366, T0), valu('v_lshrrev_b32', RH, 16, T1),
              valu('v_mul_u32_u24', T1, 48, RH), valu('v_sub_u32', T0, T0, T1),
              valu('v_lshl_or_b32', T1, RH, 1, sT[0]), valu('v_xor_b32', T0, T0, T1), valu('v_mul_u32_u24', T1, 768, RH),
              valu('v_lshl_add_u32', WD[b], T0, 4, T1))
            if b: A(valu('v_subrev_u32', WD[b], 1024 * b, WD[b]))
        A(valu('v_lshrrev_b32', T0, 4, vL), valu('v_bfe_u32', T1, vL, 2, 2), valu('v_lshl_add_u32', RW, T0, 3, T1), valu('v_mul_u32_u24', RW, 768, RW),
          valu('v_and_b32', T2, 1, vL), valu('v_lshl_add_u32', RW, T2, 3, RW),
          valu('v_and_b32', T0, 1, T0), valu('v_lshlrev_b32', T0, 3, T0), valu('v_lshl_or_b32', FW, T1, 1, T0),
          valu('v_bfe_u32', T2, vL, 1, 1), salu('s_mul_i32', sT[0], sW, 12), valu('v_add_u32', T2, sT[0], T2))
        for j in range(6):
            A(valu('v_add_u32', T0, 2 * j, T2), valu('v_xor_b32', T0, T0, FW), valu('v_lshl_add_u32', WT[j], T0, 4, RW))

    def role(self):
        A = self.A; o = self.o
        A(salu('s_lshr_b32', sROLE, sB, 4), salu('s_bfe_u32', sP0, sB, 0x20001), salu('s_bitcmp1_b32', sB, 3))
        A.line('    s_cbranch_scc0 L_early')
        A(salu('s_cmp_lt_u32', sROLE, 6)); A.line('    s_cbranch_scc1 L_prodA')
        A(salu('s_cmp_lt_u32', sROLE, 9)); A.line('    s_cbranch_scc1 L_prodV')
        st = (list(A.vm), list(A.lg))
        self.prod_touch()
        srd(A, SRD_WL, PWL, 294912); self.w_touch()
        srd(A, SRD_LO, PLO, 12582912); self.flo_dma(); self.common_srds(); self.addr_setup1(); self.setup_all()
        for t in range(o.npre_late): A(self.x_loads(t, t))
        A.line('    s_branch L_late')
        A.reset_state(*st); A.label('L_prodA'); self.prodA()
        A.line('    s_branch L_emain')
        A.reset_state(*st); A.label('L_prodV'); self.prodV()
        A.line('    s_branch ' + ('L_late' if o.pv_late else 'L_emain'))
        A.reset_state(*st); A.label('L_early')
        srd(A, SRD_X, PWQ, 294912)
        A(salu('s_mul_i32', sT[0], sP0, 73728), salu('s_mul_i32', sT[1], sROLE, 36 * 128), salu('s_add_u32', sT[0], sT[0], sT[1]))
        self.touch((3, 4), 36, SRD_X, sT[0], v(158))
        srd(A, SRD_LO, PLO, 12582912); self.flo_dma()
        srd(A, SRD_WL, PWL, 294912); self.w_touch()
        self.common_srds()
        l = self.lab('ep')
        A(salu('s_or_b32', sT[0], sB, sW), salu('s_cmp_lg_u32', sT[0], 0)); A.line(f'    s_cbranch_scc1 {l}')
        A.line('    s_memrealtime s[6:7]\n    s_waitcnt lgkmcnt(0)\n    s_or_b32 s6, s6, 1\n    v_mov_b32 v56, s6\n    v_mov_b32 v55, 0')
        A.line(f'    s_mov_b64 exec, 1\n    buffer_store_dword v56, v55, {SRD_DB}, 0 offen offset:{DB_EP*4} sc1\n    s_mov_b64 exec, -1')
        A.label(l)
        A.vm.append(('junk', set())); A.ev = {}
        self.addr_setup1(); self.setup_all()
        A.label('L_emain')
        ns = self.nstamp
        self.main(0, 'E')
        A.line('    s_branch L_tail')
        A.label('L_late')
        vm = [('flo', set())] * 16
        for t in range(o.npre_late): vm += [(f'x{t}', STG[t][i].regs()) for i in range(12)]
        A.reset_state(vm, [])
        self.nstamp = ns
        self.main(o.npre_late, 'L')
        A.label('L_tail')
        self.tail_phase()

    def prod_touch(self):
        A = self.A
        srd(A, SRD_Y, PWM, 294912); srd(A, SRD_X, PWK, 294912); srd(A, SRD_Z, PQ, 12288)
        A(salu('s_sub_u32', sT[0], sROLE, 9), salu('s_mul_i32', sT[1], sT[0], 165), valu('v_min_u32', T0, 164, vTID), valu('v_add_u32', T0, sT[1], T0),
          valu('v_mul_u32_u24', T1, 21846, T0), valu('v_lshrrev_b32', T1, 16, T1), valu('v_mul_u32_u24', T1, 384, T1), valu('v_lshl_add_u32', T0, T0, 7, T1),
          salu('s_and_b32', sT[2], sB, 1), salu('s_mul_i32', sT[1], sT[2], 384), salu('s_cmp_eq_u32', sW, 3))
        l = self.lab('pt'); l2 = self.lab('pt')
        A.line(f'    s_cbranch_scc1 {l}')
        A.line(f'    buffer_load_dword v156, {T0}, {SRD_Y}, {sT[1]} offen')
        A.line(f'    s_branch {l2}')
        A.label(l)
        A(salu('s_mul_i32', sT[1], sP0, 73728), salu('s_mul_i32', sT[2], sT[2], 36864), salu('s_add_u32', sT[1], sT[1], sT[2]),
          salu('s_mul_i32', sT[2], sT[0], 42 * 128), salu('s_add_u32', sT[1], sT[1], sT[2]), salu('s_mul_i32', sT[2], sT[0], 14 * 128),
          valu('v_min_u32', T0, 41, vL), valu('v_lshlrev_b32', T0, 7, T0), valu('v_min_u32', T1, 13, vL), valu('v_lshlrev_b32', T1, 7, T1))
        A.line(f'    buffer_load_dword v156, {T0}, {SRD_X}, {sT[1]} offen')
        A.line(f'    buffer_load_dword v155, {T1}, {SRD_Z}, {sT[2]} offen')
        A.label(l2)
        A.vm.append(('junk', v(156).regs())); A.vm.append(('junk', v(155).regs())); A.ev = {}

    def signal(self, sdw):
        A = self.A
        A(valu('v_mov_b32', T0, 1), valu('v_mov_b32', T1, sdw), valu('v_lshlrev_b32', T1, 2, T1), salu('s_mov_b64', 'exec', 1))
        A.line(f'    buffer_atomic_add {T0}, {T1}, {SRD_DB}, 0 offen sc1')
        A(salu('s_mov_b64', 'exec', -1))

    def prodA(self):
        A = self.A; o = self.o
        sH, sKS = sP0, sP1
        fs = (lambda: self.stamp(fine=True)) if o.fine == 10 else (lambda: None)
        fs()
        A(salu('s_and_b32', sT[0], sB, 1), salu('s_mul_i32', sKS, sT[0], 6), salu('s_add_u32', sKS, sKS, sROLE))
        srd(A, SRD_Y, PWM, 294912)
        MD = v(8)
        A(valu('v_lshrrev_b32', T0, 2, vL), valu('v_mul_u32_u24', T0, 768, T0), valu('v_and_b32', T1, 3, vL),
          valu('v_lshl_add_u32', MD, T1, 4, T0),
          salu('s_mul_i32', sSO, sW, 96 * 768), salu('s_lshl_b32', sT[0], sKS, 6), salu('s_add_u32', sSO, sSO, sT[0]),
          salu('s_mul_i32', sT[1], sW, 6144), salu('s_add_u32', sT[1], sT[1], 90112))
        for i in range(6):
            A(salu('s_add_u32', 'm0', sT[1], i * 1024), salu('s_add_u32', sSO2, sSO, i * 16 * 768), bload_lds(MD, SRD_Y, sSO2, 0, '', tag='pa'))
        srd(A, SRD_Z, PQ, 12288)
        A(salu('s_lshl_b32', sT[0], sW, 2), salu('s_lshr_b32', sT[0], 0x1890, sT[0]), salu('s_and_b32', sT[0], sT[0], 15),
          salu('s_lshl_b32', sT[0], sT[0], 4), salu('s_mul_i32', sT[2], sW, 3072), salu('s_add_u32', sT[1], sT[2], MISC))
        for r in range(4): A(salu('s_xor_b32', sK[r], sT[0], 16 * flat(r)))
        self.rows_dma(SRD_Z, [(r * 768, r * 768, sK[r]) for r in range(4)], sT[2], sT[1], '', 'pa')
        WK = [[v(232 + 12 * tau + 4 * u, 4) for u in range(3)] for tau in range(2)]
        KD = v(9)
        lk = self.lab('nk')
        A(salu('s_cmp_eq_u32', sW, 3)); A.line(f'    s_cbranch_scc1 {lk}')
        srd(A, SRD_X, PWK, 294912)
        A(salu('s_mul_i32', sSO, sH, 73728), salu('s_mul_i32', sT[0], sKS, 32 * 192), salu('s_add_u32', sSO, sSO, sT[0]),
          salu('s_lshl_b32', sT[0], sW, 11), salu('s_add_u32', sSO, sSO, sT[0]), salu('s_add_u32', 'm0', sT[0], R0 + 40960))
        for i in range(2): A(bload_lds(LIN, SRD_X, sSO, i * 1024, '', tag='pa'))
        A.label(lk)
        fs()
        srd(A, SRD_WL, PWL, 294912); srd(A, SRD_LO, PLO, 12582912); self.common_srds(); self.addr_setup1()
        QA, QB, QA2, QB2 = v(13), v(14), v(15), v(16)
        QF = [v(17 + i) for i in range(4)]
        self.wtr_setup(QA, QB); self.fa_setup(QF, MISC)
        A(salu('s_lshl_b32', sT[0], sW, 6), valu('v_add_u32', QA, sT[0], QA), valu('v_add_u32', QB, sT[0], QB),
          valu('v_add_u32', QA2, 65536, QA), valu('v_add_u32', QB2, 65536, QB))
        MA = v(21)
        A(valu('v_lshrrev_b32', T0, 4, vL), valu('v_lshlrev_b32', T0, 3, T0), valu('v_bfe_u32', T1, vL, 2, 2), valu('v_add_u32', T0, T0, T1),
          valu('v_lshlrev_b32', T0, 6, T0), valu('v_and_b32', T1, 3, vL), valu('v_lshl_add_u32', T0, T1, 4, T0),
          valu('v_add_u32', MA, 90112, T0))
        srd(A, SRD_X, PWQ, 294912)
        QD = [v(10 + i) for i in range(3)]
        self.wd_setup(192, QD, False)
        A(salu('s_mul_i32', sSO, sH, 73728), salu('s_mul_i32', sT[0], sW, 18432), salu('s_add_u32', sSO, sSO, sT[0]))
        for pc in range(3):
            A(salu('s_mul_i32', sT[0], sW, 3), salu('s_add_u32', sT[0], sT[0], pc), salu('s_mul_i32', sT[1], sT[0], 6144),
              salu('s_cmp_ge_u32', sT[0], 8), salu('s_cselect_b32', sT[2], 16384, 0), salu('s_add_u32', sT[1], sT[1], sT[2]))
            for aa in range(2):
                for b in range(3):
                    A(salu('s_add_u32', 'm0', sT[1], (3 * aa + b) * 1024), salu('s_add_u32', sSO2, sSO, (2 * pc + aa) * 3072),
                      bload_lds(QD[b], SRD_X, sSO2, 0, '', tag='pa'))
        fs()
        A.wait_vm()
        A.barrier()
        fs()
        D = [v(56, 4), v(60, 4)]; E = [v(64, 4), v(68, 4)]; QP = v(72, 4)
        QQ = [v(88 + 4 * i, 4) for i in range(12)]; TT = [[v(136 + 8 * i + 4 * j, 4) for j in range(2)] for i in range(12)]
        lm = self.lab('pam'); lj = self.lab('paj')
        A(salu('s_cmp_eq_u32', sW, 3)); A.line(f'    s_cbranch_scc1 {lm}')
        self.w_touch(255); self.flo_dma()
        def gemm(rd):
            def reads(ks):
                return [ds_read('ds_read_b128', QQ[ks], QF[ks & 3], (ks >> 2) * 256)] + rd(ks, TT[ks])
            for ks in range(3): A(reads(ks))
            for ks in range(12):
                for j in range(2): A(mfma16(D[j], TT[ks][j], QQ[ks], D[j] if ks else 0))
                if ks + 3 < 12: A(reads(ks + 3))
        def rdq(ks, T):
            L = []
            for j in range(2):
                ad = ((QA, QB) if ks < 8 else (QA2, QB2))[j]
                for r in range(2):
                    L.append(ds_read('ds_read_b64_tr_b16', T[j][2 * r:2 * r + 2], ad, (ks % 8) * 6144 + 32 * j + r * 768))
            return L
        gemm(rdq)
        for j in range(2):
            A(valu('v_cvt_pk_bf16_f32', QP[2 * j], D[j][0], D[j][1]), valu('v_cvt_pk_bf16_f32', QP[2 * j + 1], D[j][2], D[j][3]))
        A(salu('s_lshl_b32', sT[0], sW, 10), salu('s_add_u32', sT[0], sT[0], R0 + 36864), valu('v_add_u32', T0, sT[0], LIN),
          ds_write('ds_write_b128', T0, QP))
        A.barrier()
        A.line(f'    s_branch {lj}')
        A.reset_state([], []); A.label(lm)
        def rdm(ks, T):
            return [ds_read('ds_read_b64_tr_b16', T[j][2 * r:2 * r + 2], MA, ks * 2048 + r * 256 + 8 * j) for j in range(2) for r in range(2)]
        A(valu('v_bfe_u32', T0, vL, 2, 2), valu('v_lshlrev_b32', T0, 3, T0), valu('v_and_b32', T1, 3, vL), valu('v_add_u32', T0, T0, T1),
          valu('v_mul_u32_u24', T0, 192, T0), valu('v_lshrrev_b32', T1, 4, vL), valu('v_lshl_add_u32', T0, T1, 3, T0), valu('v_add_u32', KD, R0 + 40960, T0))
        gemm(rdm)
        for tau in range(2):
            for u in range(3):
                for e in range(2):
                    A(ds_read('ds_read_b64', WK[tau][u][2 * e:2 * e + 2], KD, tau * 768 + u * 64 + e * 32))
        A(salu('s_mov_b32', sK[1], S1), salu('s_mov_b32', sK[2], S2), valu('v_add_u32', T0, R0 + 36864, LIN),
          salu('s_mul_i32', sT[0], sH, 12), salu('s_add_u32', sT[0], sT[0], sKS), salu('s_lshl_b32', sT[0], sT[0], 10),
          salu('s_add_u32', sT[1], sH, DB_A))
        for tau in range(2):
            for i in range(4):
                A(valu('v_mul_f32', D[tau][i], sK[2], D[tau][i]))
        fs()
        A.barrier()
        fs()
        for u in range(3): A(ds_read('ds_read_b128', QQ[u], T0, u * 1024))
        for u in range(3):
            for tau in range(2): A(mfma16(E[tau], WK[tau][u], QQ[u], E[tau] if u else 0))
        for tau in range(2):
            for i in range(4):
                A(valu('v_fma_f32', D[tau][i], E[tau][i], sK[1], D[tau][i]))
        for tau in range(2):
            A(valu('v_cvt_pk_bf16_f32', QP[2 * tau], D[tau][0], D[tau][1]), valu('v_cvt_pk_bf16_f32', QP[2 * tau + 1], D[tau][2], D[tau][3]))
        A(bstore('buffer_store_dwordx4', QP, LIN, SRD_WS, sT[0], WS_A, 'sc1', tag='st'))
        fs()
        A.wait_vm()
        fs()
        self.signal(sT[1])
        self.flo_dma()
        A.label(lj)
        A.reset_state([], [])
        A.nop(2)
        self.setup_all()

    def prodV(self):
        A = self.A; o = self.o
        sH, sJ = sP0, sP1
        A(salu('s_and_b32', sT[0], sB, 1), salu('s_mul_i32', sJ, sT[0], 3), salu('s_add_u32', sJ, sJ, sROLE), salu('s_sub_u32', sJ, sJ, 6))
        srd(A, SRD_X, PWV, 294912)
        VD = v(8)
        A(valu('v_lshrrev_b32', T0, 1, vL), valu('v_mul_u32_u24', T0, 192, T0), valu('v_and_b32', T1, 1, vL),
          valu('v_lshl_add_u32', VD, T1, 4, T0),
          salu('s_mul_i32', sSO, sH, 73728), salu('s_mul_i32', sT[0], sW, 96 * 192), salu('s_add_u32', sSO, sSO, sT[0]),
          salu('s_lshl_b32', sT[0], sJ, 5), salu('s_add_u32', sSO, sSO, sT[0]), salu('s_mul_i32', sT[1], sW, 3072))
        for i in range(3):
            A(salu('s_add_u32', 'm0', sT[1], i * 1024), salu('s_add_u32', sSO2, sSO, i * 32 * 192), bload_lds(VD, SRD_X, sSO2, 0, '', tag='pv'))
        srd(A, SRD_WL, PWL, 294912); self.w_touch()
        srd(A, SRD_LO, PLO, 12582912); self.common_srds(); self.addr_setup1()
        VA = v(9)
        A.wait_vm()
        self.flo_dma()
        if o.pv_late: A(self.x_loads(0, 0))
        A(valu('v_lshrrev_b32', T0, 4, vL), valu('v_lshlrev_b32', T0, 3, T0), valu('v_bfe_u32', T1, vL, 2, 2), valu('v_add_u32', T0, T0, T1),
          valu('v_lshlrev_b32', T0, 5, T0), valu('v_and_b32', T1, 3, vL), valu('v_lshl_add_u32', T0, T1, 3, T0),
          salu('s_mul_i32', sT[1], sW, 3072), valu('v_add_u32', VA, sT[1], T0))
        ON = v(160, 4); FR = [v(164 + 4 * i, 4) for i in range(3)]; D = v(176, 4); CS = v(180, 4)
        for i in range(4): A(valu('v_mov_b32', ON[i], 0x3f803f80))
        for u in range(3):
            for r in range(2): A(ds_read('ds_read_b64_tr_b16', FR[u][2 * r:2 * r + 2], VA, u * 1024 + r * 128))
        for u in range(3): A(mfma16(D, ON, FR[u], D if u else 0))
        A(valu('v_and_b32', T0, 15, vL), valu('v_lshlrev_b32', T0, 4, T0), salu('s_lshl_b32', sT[0], sW, 2),
          valu('v_add_u32', T1, sT[0], T0), ds_write('ds_write_b32', T1, D[0], 16384))
        A.barrier()
        A(ds_read('ds_read_b128', CS, T0, 16384))
        A(valu('v_add_f32', CS[0], CS[0], CS[1]), valu('v_add_f32', CS[2], CS[2], CS[3]), valu('v_add_f32', CS[0], CS[0], CS[2]),
          valu('v_mul_f32', CS[0], 1.0 / 384, CS[0]))
        for u in range(3):
            for i in range(4):
                x = FR[u][i]
                A(valu('v_lshlrev_b32', T0, 16, x), valu('v_and_b32', T1, 0xffff0000, x), valu('v_sub_f32', T0, T0, CS[0]),
                  valu('v_sub_f32', T1, T1, CS[0]), valu('v_cvt_pk_bf16_f32', x, T0, T1))
        A(salu('s_mul_i32', sT[0], sH, 12), salu('s_mul_i32', sT[1], sW, 3), salu('s_add_u32', sT[0], sT[0], sT[1]),
          salu('s_mul_i32', sT[0], sT[0], 6), salu('s_add_u32', sT[0], sT[0], sJ), salu('s_lshl_b32', sT[0], sT[0], 10),
          salu('s_add_u32', sT[0], sT[0], WS_V))
        for u in range(3):
            A(bstore('buffer_store_dwordx4', FR[u], LIN, SRD_WS, sT[0], 0, 'sc1', tag='st'), salu('s_add_u32', sT[0], sT[0], 6144))
        A.wait_vm(); A.barrier()
        l = self.lab('pub')
        A(salu('s_cmp_lg_u32', sW, 0)); A.line(f'    s_cbranch_scc1 {l}')
        self.signal(DB_V)
        A.label(l)
        A.reset_state([], []); A.nop(2)
        self.setup_all()
        if o.pv_late:
            for t in range(1, o.npre_late): A(self.x_loads(t, t))

    def setup_all(self):
        A = self.A
        self.w_setup()
        self.fa_setup(FA, R0)
        A(valu('v_mov_b32', T0, 0x3f803f80), valu('v_lshlrev_b32', T1, 2, vTID), valu('v_min_u32', T1, 764, T1),
          ds_write('ds_write_b32', T1, T0, ONES), valu('v_mov_b32', T0, 0), valu('v_lshlrev_b32', T1, 2, vL),
          ds_write('ds_write_b32', T1, T0, FL))
        self.addr_setup2()

    def main(self, npre, cls):
        A = self.A; o = self.o
        self.cls = cls
        dbg = o.dump if o.dump else ''
        for ks in range(4): A(self.w_dma(ks))
        self.stamp()
        post = [t for t in range(npre, 4)]
        def reads(ks):
            b = ks & 1
            L = [ds_read('ds_read_b128', FF[b][0], FA[ks & 3], (ks >> 2) * 256)]
            wr = []
            for j in range(6):
                wr.append([ds_read('ds_read_b64_tr_b16', WF[b][j][2 * r:2 * r + 2], WT[j], (ks & 1) * 24576 + r * 3072) for r in range(2)])
            L += wr[0]
            for m in range(1, 4): L.append(ds_read('ds_read_b128', FF[b][m], FA[ks & 3], m * 12288 + (ks >> 2) * 256))
            for j in range(1, 6): L += wr[j]
            if ks & 1:
                for j in range(6): L.append(valu('v_xor_b32', WT[j], 0x10000, WT[j]))
            return L
        A.wait_vm('w0'); A.barrier()
        self.stamp()
        A(reads(0))
        aload = []
        for i in range(12):
            G = [salu('s_mul_i32', sSO, sW, 12288)] if i == 0 else ([salu('s_add_u32', sSO, sSO, 4096)] if i % 4 == 0 else [])
            aload.append(G + [bload('buffer_load_dwordx4', AFR[i], LIN, SRD_WS, sSO, (i % 4) * 1024, '', tag='A')])
        x0 = self.x_dma(0) if npre == 0 else []
        for ks in range(12):
            b = ks & 1
            M = [mfma16(LACC[m][j], WF[b][j], FF[b][m], LACC[m][j] if ks else 0) for j in range(6) for m in range(4)]
            fill = {}
            if ks < 11:
                def sync(A, ks=ks):
                    A.wait_vm(f'w{ks+1}', also_lg=True); A.barrier()
                fill[0] = [sync]
                spread(fill, reads(ks + 1), 0, 1)
            extra = []
            if ks <= 7: extra = self.w_dma(ks + 4)
            if ks == o.kflag:
                extra = extra + [[valu('v_lshlrev_b32', T0, 2, vL), bload('buffer_load_dword', FDB, T0, SRD_DB, 0, 0, 'sc1', tag='fl')]]
            if ks == 8: extra = [[self.check_flagA]] + aload[:6]
            if ks == 9: extra = aload[6:]
            if ks == 10: extra = x0[:6]
            if ks == 11: extra = x0[6:]
            spread_groups(fill, extra, 2, 4 if len(extra) <= 6 else 3)
            if o.fine == 11: self.stamp(fine=True)
            A(interleave(M, fill))
        self.stamp()
        if o.fine == 11: self.stamp(fine=True)
        A.barrier()
        LW = v(56); PK = [v(60 + 4 * i, 4) for i in range(4)]
        A(valu('v_and_b32', T0, 15, vL),
          valu('v_lshrrev_b32', T1, 2, T0), valu('v_lshrrev_b32', T2, 3, T0), valu('v_xor_b32', T2, T1, T2),
          valu('v_and_b32', T2, 1, T2), valu('v_lshlrev_b32', T2, 3, T2), valu('v_and_b32', T1, 1, T1), valu('v_or_b32', T2, T2, T1),
          valu('v_and_b32', T1, 1, T0), valu('v_lshl_or_b32', T2, T1, 2, T2), valu('v_and_b32', T1, 2, T0), valu('v_or_b32', T2, T2, T1),
          valu('v_mul_u32_u24', T0, 768, T0), valu('v_add_u32', LW, R0, T0),
          valu('v_bfe_u32', T0, vL, 4, 1), valu('v_lshlrev_b32', T0, 1, T0), valu('v_lshrrev_b32', T1, 5, vL), valu('v_add_u32', T0, T0, T1),
          salu('s_mul_i32', sT[0], sW, 12), valu('v_add_u32', T0, sT[0], T0))
        LWJ = [v(57), v(58), v(59)]
        for jp in range(3):
            A(valu('v_add_u32', T1, 4 * jp, T0), valu('v_xor_b32', T1, T1, T2), valu('v_lshl_add_u32', LWJ[jp], T1, 4, LW))
        n = 0
        for m in range(4):
            for jp in range(3):
                P = PK[n % 4]; n += 1
                x, y = LACC[m][2 * jp], LACC[m][2 * jp + 1]
                A(valu('v_cvt_pk_bf16_f32', P[0], x[0], x[1]), valu('v_cvt_pk_bf16_f32', P[1], x[2], x[3]),
                  valu('v_cvt_pk_bf16_f32', P[2], y[0], y[1]), valu('v_cvt_pk_bf16_f32', P[3], y[2], y[3]),
                  permswap('v_permlane16_swap_b32', P[0], P[2]), permswap('v_permlane16_swap_b32', P[1], P[3]),
                  ds_write('ds_write_b128', LWJ[jp], P, m * 12288))
        A.barrier()
        self.stamp()
        if dbg == 'lat':
            self.dump_lds(R0, 49152); return
        SA4 = CX
        A(salu('s_mul_i32', sT[0], sW, 12288))
        FO = [v(78 + i) for i in range(4)]; ONQ = v(82, 4)
        for j in range(4): A(valu('v_add_u32', FO[j], sT[0], FA[j]))
        for i in range(4): A(valu('v_mov_b32', ONQ[i], 0x3f803f80))
        rd = []; M = []
        nq = 0
        for ks in range(12):
            q = RING[nq % 8]; nq += 1
            rd.append((len(M), ds_read('ds_read_b128', q, FO[ks & 3], (ks >> 2) * 256)))
            M.append(mfma16(GA, q, q, GA if ks else 0)); M.append(mfma16(LSM, q, ONQ, LSM if ks else 0))
        for ks in range(12): M.append(mfma16(SA4, ONQ, AFR[ks], SA4 if ks else 0))
        for m in range(4):
            for ks in range(12):
                q = RING[nq % 8]; nq += 1
                rd.append((len(M), ds_read('ds_read_b128', q, FA[ks & 3], m * 12288 + (ks >> 2) * 256)))
                M.append(mfma16(SLO[m], q, AFR[ks], SLO[m] if ks else 0))
        fill = {}
        self.place_reads(fill, rd, M, 6)
        ex = [valu('v_lshrrev_b32', T0, 4, vL), valu('v_mul_u32_u24', T0, 80, T0)]
        for t in range(4):
            ex += [valu('v_add_u32', T1, 4 * t, T0), ds_bperm(LSQ[t], T1, GA[t])]
        spread(fill, ex, 30, 1)
        fill.setdefault(46, []).append(valu('v_mov_b32', SUMA, SA4[0]))
        wr = []
        for t in range(npre):
            wr += [ds_write('ds_write_b128', XW, STG[t][i], i * 1024) for i in range(12)] + [valu('v_xor_b32', XW, 0x10000, XW)]
        if npre <= 1: spread_groups(fill, self.x_dma(1), o.x1_slot if npre == 0 else 3, 4)
        spread(fill, wr, 1, 1, 3)
        A(interleave(M, fill))
        if dbg == 'slo':
            self.dump_regs([r for q in SLO for r in (q[0], q[1], q[2], q[3])] + [LSQ[i] for i in range(4)] + [LSM[i] for i in range(4)] + [SUMA]); return
        self.stamp()
        A(valu('v_mov_b32', LSUM, 0), valu('v_mov_b32', MREF, 0), valu('v_mov_b32', FLA, FL))
        A.wait_vm('x0'); A.wait_lg()
        SM, sfill, ex = self.stats(0, RING)
        A(interleave(SM, sfill)); A(ex)
        A.barrier()
        self.stamp()
        self.wvq = SPARE + STG[2] + STG[3] + STG[0] + STG[1] + AFR + SLO + SACC
        wv = 0
        plan = o.plan_e if cls == 'E' else o.plan_l
        for t in range(4):
            ns_, nu_ = plan[t]
            sl_ = self.x_dma(t + 1) if t in (1, 2) else []
            chk = wv == 0 and ns_ + nu_ > 0
            hi = min(52, wv + ns_); sl_ += self.wv_loads(wv, hi); wv = hi
            hi = min(52 if t < 3 else 72, wv + nu_); ul = self.wv_loads(wv, hi); wv = hi
            if chk: self.check_flagV(A)
            self.step(t, ul, sl_)
            if dbg == f'step{t}': return
        self.wv_next = wv
        self.epilogue()

    def wv_loads(self, i0, i1):
        L = []
        for i in range(i0, i1):
            G = [salu('s_add_u32', sSO2, sP0, (i // 4) * 4096)] if (i == i0 or i % 4 == 0) else []
            G.append(bload('buffer_load_dwordx4', self.wvq[i], LIN, SRD_WS, sSO2, (i % 4) * 1024, '', tag='wv'))
            L.append(G)
        return L

    def place_reads(self, fill, rd, M, ahead):
        for k, (m, ins) in enumerate(rd):
            if k < ahead: slot = -1
            else: slot = rd[k - ahead][0]
            fill.setdefault(slot, []).append(ins)

    def check_flagA(self, A):
        lr = self.lab('fa'); ls = self.lab('fs')
        A.label(lr)
        A(valu('v_cmp_le_u32', 'vcc', 12, FDB), salu('s_lshr_b64', sM, 'vcc', 32), readlane(sEP, FDB, DB_EP),
          readlane(sVF, FDB, DB_V),
          salu('s_and_b32', sM[0], sM[0], 15), salu('s_cmp_eq_u32', sM[0], 15), salu('s_cselect_b32', sM[0], sEP, 0),
          salu('s_cmp_eq_u32', sM[0], 0))
        A.line(f'    s_cbranch_scc1 {ls}')
        lb = self.lab('fb'); A.label(lb)
        B = Asm(); B.label(ls)
        B.line('    s_sleep 2')
        B(valu('v_lshlrev_b32', T0, 2, vL), bload('buffer_load_dword', FDB, T0, SRD_DB, 0, 0, 'sc1'))
        B.wait_vm()
        self.spin_guard(B, lr)
        B.line(f'    s_branch {lb}')
        self.tail.append(B.text())
        A(salu('s_mul_i32', sTAG, sEP, 0x9E3779B1))
        A.line('    s_getreg_b32 s46, hwreg(HW_REG_XCC_ID)'); A.clock += 1
        A(salu('s_and_b32', sXCC, sXCC, 15))
        if self.o.fakegrp:
            self.fake_group(A)
        A(salu('s_and_b32', sT[0], sTAG, 0xfffffff0), salu('s_or_b32', sT[0], sT[0], sXCC),
          valu('v_mov_b32', T0, sT[0]), salu('s_lshl_b32', sT[1], sB, 2), salu('s_add_u32', sT[1], sT[1], WS_TAB), valu('v_mov_b32', T1, 0),
          salu('s_mov_b64', 'exec', 1))
        A(bstore('buffer_store_dword', T0, T1, SRD_WS, sT[1], 0, 'sc1', tag='tab'))
        A(salu('s_mov_b64', 'exec', -1))

    def check_flagV(self, A):
        ls = self.lab('fv'); lb = self.lab('fvb')
        A(salu('s_cmp_lt_u32', sVF, 24)); A.line(f'    s_cbranch_scc1 {ls}')
        A.label(lb)
        B = Asm(); B.label(ls); B.nop(8)
        B(valu('v_mov_b32', T2, 4 * DB_V), bload('buffer_load_dword', T2, T2, SRD_DB, 0, 0, 'sc1'), readfirstlane(sVF, T2),
          salu('s_add_u32', sCNT, sCNT, 1), salu('s_cmp_ge_u32', sCNT, 400000))
        B.line(f'    s_cbranch_scc1 {lb}')
        B(salu('s_cmp_lt_u32', sVF, 24)); B.line(f'    s_cbranch_scc1 {ls}')
        B.line(f'    s_branch {lb}')
        self.tail.append(B.text())

    def fake_group(self, A):
        A(salu('s_lshr_b32', sT[0], sB, 3), salu('s_cmp_lt_u32', sT[0], self.o.fakegrp), salu('s_cselect_b32', sT[0], 8, 0),
          salu('s_and_b32', sXCC, sXCC, 7), salu('s_add_u32', sXCC, sXCC, sT[0]))

    def addr_setup2(self):
        A = self.A
        G = v(56); Q = v(57); F = v(58)
        A(valu('v_lshrrev_b32', G, 4, vL), valu('v_and_b32', Q, 15, vL))
        A(valu('v_and_b32', T0, 3, Q), valu('v_lshlrev_b32', T0, 2, T0), valu('v_lshrrev_b32', T1, 1, Q), valu('v_and_b32', T1, 2, T1),
          valu('v_or_b32', T0, T0, T1), valu('v_xor_b32', T0, T0, G), valu('v_lshlrev_b32', T0, 4, T0), valu('v_mul_u32_u24', T1, 768, Q),
          salu('s_mul_i32', sT[0], sW, 12288))
        for j in range(4):
            A(valu('v_xor_b32', T2, 64 * j, T0), valu('v_add_u32', XA[j], T1, T2), valu('v_add_u32', XO[j], sT[0], XA[j]))
        A(valu('v_add_u32', XW, sT[0], LIN), salu('s_mov_b32', sXB, sT[0]))
        HH = v(59); JJ = v(60); II = v(61); HB = v(62)
        A(valu('v_lshrrev_b32', HH, 5, vL), valu('v_and_b32', T0, 1, G), valu('v_lshlrev_b32', T0, 1, T0), valu('v_and_b32', T1, 1, vL),
          valu('v_or_b32', JJ, T0, T1), valu('v_lshrrev_b32', II, 2, Q), valu('v_and_b32', T0, 2, vL), valu('v_lshlrev_b32', HB, 2, T0))
        for ct in range(3):
            A(salu('s_mul_i32', sT[0], sW, 3), salu('s_add_u32', sT[0], sT[0], ct), salu('s_lshr_b32', sT[1], sT[0], 2),
              salu('s_lshl_b32', sT[1], sT[1], 8), salu('s_and_b32', sT[0], sT[0], 3), salu('s_lshl_b32', sT[0], sT[0], 2))
            for r in range(2):
                A(valu('v_lshlrev_b32', T0, 2, II), valu('v_xor_b32', T0, T0, JJ), valu('v_xor_b32', T0, sT[0], T0))
                if r: A(valu('v_xor_b32', T0, 2, T0))
                A(valu('v_lshl_add_u32', T0, T0, 4, HB), valu('v_add_u32', T0, sT[1], T0),
                  valu('v_lshl_add_u32', T1, HH, 3, II), valu('v_add_u32', T1, 4 * r, T1), valu('v_mul_u32_u24', T1, 768, T1),
                  valu('v_add_u32', XT[2 * ct + r], T0, T1))
                A(valu('v_lshrrev_b32', T0, 1, II), valu('v_and_b32', T1, 1, II),
                  valu('v_lshl_add_u32', T2, T0, 2, T1), valu('v_add_u32', T2, 8 * r, T2), valu('v_lshl_add_u32', T2, HH, 4, T2),
                  valu('v_mul_u32_u24', T2, 768, T2),
                  valu('v_lshl_or_b32', T1, T1, 2, T0))
                A(valu('v_xor_b32', T0, r, T0), valu('v_lshl_or_b32', T1, T0, 3, T1),
                  valu('v_xor_b32', T1, T1, JJ), valu('v_xor_b32', T1, sT[0], T1), valu('v_lshl_add_u32', T1, T1, 4, HB),
                  valu('v_add3_u32', T1, T1, T2, sT[1]), valu('v_add_u32', LT[2 * ct + r], R0, T1))
        A(salu('s_lshl_b32', sT[0], sW, 11), salu('s_add_u32', sT[0], sT[0], PH),
          valu('v_lshrrev_b32', T0, 1, Q), valu('v_lshrrev_b32', T1, 1, G), valu('v_xor_b32', T0, T0, T1), valu('v_lshlrev_b32', T0, 4, T0),
          valu('v_and_b32', T1, 1, G), valu('v_lshl_add_u32', T0, T1, 3, T0), valu('v_lshlrev_b32', T1, 7, Q), valu('v_add_u32', T1, sT[0], T1))
        for g in range(4): A(valu('v_xor_b32', T2, 32 * g, T0), valu('v_add_u32', PHW[g], T1, T2))
        A(valu('v_bfe_u32', T0, vL, 1, 3), valu('v_xor_b32', T0, T0, HH), valu('v_lshlrev_b32', T0, 4, T0),
          valu('v_and_b32', T1, 31, vL), valu('v_lshlrev_b32', T1, 7, T1), valu('v_add_u32', T1, PH, T1))
        for g in range(4): A(valu('v_xor_b32', T2, 32 * g, T0), valu('v_add_u32', PHR[g], T1, T2))
        A(salu('s_lshl_b32', sT[0], sW, 10), salu('s_add_u32', sT[0], sT[0], PL), valu('v_lshlrev_b32', T0, 6, Q), valu('v_add_u32', T0, sT[0], T0),
          valu('v_lshl_add_u32', T0, II, 4, T0), valu('v_lshl_add_u32', PLW, G, 2, T0))
        A(valu('v_bfe_u32', T0, vL, 2, 2), valu('v_xor_b32', T0, T0, HH), valu('v_lshlrev_b32', T0, 4, T0),
          valu('v_and_b32', T1, 31, vL), valu('v_lshlrev_b32', T1, 6, T1), valu('v_add_u32', T1, PL, T1),
          valu('v_add_u32', PLR[0], T1, T0), valu('v_xor_b32', T0, 32, T0), valu('v_add_u32', PLR[1], T1, T0))
        A(valu('v_lshlrev_b32', T0, 4, G), valu('v_add_u32', RRD, RR, T0),
          salu('s_lshl_b32', sT[0], sW, 6), salu('s_add_u32', sT[0], sT[0], RR), valu('v_lshlrev_b32', T0, 2, Q), valu('v_add_u32', T0, sT[0], T0),
          valu('v_lshlrev_b32', T1, 2, vL), valu('v_add_u32', T1, DUM, T1), valu('v_cmp_eq_u32', 'vcc', II, G),
          valu('v_cndmask_b32', RWR, T1, T0))
        A(valu('v_lshlrev_b32', T0, 2, II), salu('s_mov_b32', sT[1], 0x1890), valu('v_lshrrev_b32', T0, T0, sT[1]), valu('v_and_b32', T0, 15, T0),
          valu('v_xor_b32', T0, T0, G), valu('v_lshlrev_b32', T0, 4, T0),
          valu('v_mul_u32_u24', T1, 3072, II), salu('s_mul_i32', sT[0], sW, 12288), salu('s_add_u32', sT[0], sT[0], R0),
          valu('v_add_u32', T1, sT[0], T1), valu('v_and_b32', T2, 3, Q), valu('v_cmp_eq_u32', 'vcc', 0, T2),
          valu('v_mov_b32', F, 768), valu('v_cndmask_b32', CD, 0, F))
        for j in range(4):
            A(valu('v_xor_b32', T2, 64 * j, T0), valu('v_add_u32', T2, T1, T2), valu('v_mov_b32', F, ONES + 64 * (j ^ 1) + 32),
              valu('v_cndmask_b32', CA[j], F, T2))
        A(salu('s_mov_b32', sK[4], 0x22222222), salu('s_mov_b32', sK[5], 0x22222222), salu('s_mov_b32', sK[6], 0xcccccccc),
          salu('s_mov_b32', sK[7], 0xcccccccc), salu('s_mov_b32', sK[8], 0x88888888), salu('s_mov_b32', sK[9], 0x88888888),
          salu('s_mov_b32', sK[1], 1.0 / 384), salu('s_mov_b32', sK[2], 1e-5), salu('s_mov_b32', sK[3], THR),
          salu('s_mul_i32', sP0, sW, 73728), salu('s_add_u32', sP0, sP0, WS_V))

    def softmax_group(self, t, g, rb, first=False, raw=False):
        r, m = rb
        S = SACC[g]; slo = SLO[g][t]
        L = []
        for i in range(4): L.append(valu('v_fma_f32', m[i], -m[i], SUMA, slo))
        for i in range(4): L.append(valu('v_add_f32', m[i], m[i], S[i]))
        if raw or first:
            for i in range(4): L.append(valu('v_mul_f32', m[i], m[i], r[i]))
            if raw: return L
            L += [valu('v_max3_f32', MREF, m[0], m[1], m[2]), valu('v_max_f32', MREF, MREF, m[3]),
                  lambda A: self.allreduce_g(A, 'v_max_f32', MREF, T2)]
            for i in range(4): L.append(valu('v_sub_f32', m[i], m[i], MREF))
        else:
            for i in range(4): L.append(valu('v_fma_f32', m[i], m[i], r[i], -MREF))
        L += self.softmax_fin(t, g, rb, track=True)
        return L

    def softmax_fin(self, t, g, rb, track):
        r, m = rb
        L = []
        if track:
            if g == 0: L += [valu('v_max3_f32', EMAX, m[0], m[1], m[2]), valu('v_max_f32', EMAX, EMAX, m[3])]
            else: L += [valu('v_max3_f32', EMAX, m[0], m[1], EMAX), valu('v_max3_f32', EMAX, m[2], m[3], EMAX)]
        for i in range(4): L.append(valu('v_exp_f32', m[i], m[i]))
        for i in range(4): L.append(valu('v_mul_f32', r[i], r[i], m[i]))
        L += [valu('v_add_f32', m[0], m[0], m[1]), valu('v_add_f32', m[2], m[2], m[3])]
        if g == 0: L.append(valu('v_add_f32', LST, m[0], m[2]))
        else: L += [valu('v_add_f32', m[0], m[0], m[2]), valu('v_add_f32', LST, LST, m[0])]
        L += [valu('v_cvt_pk_bf16_f32', m[2], r[0], r[1]), valu('v_cvt_pk_bf16_f32', m[3], r[2], r[3]),
              valu('v_add_f32', r[0], r[0], r[1]), valu('v_add_f32', r[2], r[2], r[3]), valu('v_add_f32', POOL[g][t & 1], r[0], r[2]),
              ds_write('ds_write_b64', PHW[g], m[2:4], 0)]
        return L

    def softmax_pk(self, t, g, rb):
        r, m = rb
        S = SACC[g]
        def pk(op, d, srcs, mods=''):
            return Ins(f'{op} {d}, ' + ', '.join(str(x) for x in srcs) + (' ' + mods if mods else ''), 'valu', regset(srcs), regset([d]))
        def bc(x):
            return (R('v', x.i & ~1, 2), x.i & 1)
        sa, sas = bc(SUMA); sl, sls = bc(SLO[g][t]); mr, mrs = bc(MREF)
        L = []
        for h in range(2):
            L.append(pk('v_pk_fma_f32', m[2*h:2*h+2], [m[2*h:2*h+2], sa, sl], f'op_sel:[0,{sas},{sls}] op_sel_hi:[1,{sas},{sls}] neg_lo:[1,0,0] neg_hi:[1,0,0]'))
        for h in range(2): L.append(pk('v_pk_add_f32', m[2*h:2*h+2], [m[2*h:2*h+2], S[2*h:2*h+2]]))
        for h in range(2):
            L.append(pk('v_pk_fma_f32', m[2*h:2*h+2], [m[2*h:2*h+2], r[2*h:2*h+2], mr], f'op_sel:[0,0,{mrs}] op_sel_hi:[1,1,{mrs}] neg_lo:[0,0,1] neg_hi:[0,0,1]'))
        L += [valu('v_max3_f32', EMAX, m[0], m[1], EMAX), valu('v_max3_f32', EMAX, m[2], m[3], EMAX)]
        for i in range(4): L.append(valu('v_exp_f32', m[i], m[i]))
        for h in range(2): L.append(pk('v_pk_mul_f32', r[2*h:2*h+2], [r[2*h:2*h+2], m[2*h:2*h+2]]))
        L += [pk('v_pk_add_f32', m[0:2], [m[0:2], m[2:4]]),
              valu('v_cvt_pk_bf16_f32', m[2], r[0], r[1]), valu('v_cvt_pk_bf16_f32', m[3], r[2], r[3]),
              ds_write('ds_write_b64', PHW[g], m[2:4], 0),
              pk('v_pk_add_f32', r[0:2], [r[0:2], r[2:4]]), valu('v_add_f32', m[0], m[0], m[1]),
              valu('v_add_f32', POOL[g][t & 1], r[0], r[1]), valu('v_add_f32', LST, LST, m[0])]
        return L

    def pool_write(self):
        L = []
        for g in range(4):
            L += [valu('v_cvt_pk_bf16_f32', T0, POOL[g][0], POOL[g][1]), valu('v_xor_b32', T1, 16 * g, PLW) if g else valu('v_mov_b32', T1, PLW),
                  ds_write('ds_write_b32', T1, T0, 0)]
        return L

    def r_reads(self, g, rb):
        return [ds_read('ds_read_b128', rb[0], RRD, 64 * g), ds_read('ds_read_b128', rb[1], RRD, 64 * g + 256)]

    def rare_softmax(self, t, lab, back):
        B = Asm(); B.label(lab)
        B.line('    s_waitcnt lgkmcnt(0)'); B.nop(16)
        for g in range(4):
            B(self.r_reads(g, RB[0])); B(self.softmax_group(t, g, RB[0], raw=True))
            m = RB[0][1]
            if g == 0: B(valu('v_max3_f32', EMAX, m[0], m[1], m[2]), valu('v_max_f32', EMAX, EMAX, m[3]))
            else: B(valu('v_max3_f32', EMAX, m[0], m[1], EMAX), valu('v_max3_f32', EMAX, m[2], m[3], EMAX))
        self.allreduce_g(B, 'v_max_f32', EMAX, T2)
        B(valu('v_max_f32', EMAX, EMAX, MREF), valu('v_sub_f32', T0, MREF, EMAX), valu('v_exp_f32', T0, T0), valu('v_mov_b32', MREF, EMAX),
          valu('v_mul_f32', LSUM, LSUM, T0))
        if t & 1:
            for g in range(4): B(valu('v_mul_f32', POOL[g][0], POOL[g][0], T0))
        B(valu('v_and_b32', T1, 15, vL), valu('v_lshlrev_b32', T1, 2, T1), salu('s_lshl_b32', sT[0], sW, 6), valu('v_add_u32', T1, sT[0], T1),
          ds_write('ds_write_b32', T1, T0, AL), valu('v_mov_b32', T0, t + 1), salu('s_lshl_b32', sT[0], sW, 2), valu('v_mov_b32', T1, sT[0]),
          ds_write('ds_write_b32', T1, T0, FL))
        for g in range(4):
            B(self.r_reads(g, RB[0])); B(self.softmax_group(t, g, RB[0], raw=True))
            m = RB[0][1]
            for i in range(4): B(valu('v_sub_f32', m[i], m[i], MREF))
            B(self.softmax_fin(t, g, RB[0], track=False))
        B.wait_lg(); B.nop(4)
        B.line(f'    s_branch {back}')
        self.tail.append(B.text())

    def rare_rescale(self, t, lab, back):
        B = Asm(); B.label(lab)
        B.line('    s_waitcnt lgkmcnt(0)'); B.nop(16)
        Y0, Y1 = RB[0][1][0], RB[0][1][1]
        B(valu('v_and_b32', Y0, 31, vL), valu('v_lshlrev_b32', Y0, 2, Y0), valu('v_bfe_u32', Y1, vL, 4, 1), valu('v_lshlrev_b32', Y1, 2, Y1))
        for nu in range(2):
            B(ds_read('ds_read_b32', T2, Y0, AL + 128 * nu), ds_read('ds_read_b32', EMAX, Y1, FL + 8 * nu),
              valu('v_cmp_eq_u32', 'vcc', t + 1, EMAX), valu('v_cndmask_b32', T2, 1.0, T2))
            for ct in range(3):
                for i in range(16): B(valu('v_mul_f32', UACC[ct][nu][i], UACC[ct][nu][i], T2))
        B.nop(4)
        B.line(f'    s_branch {back}')
        self.tail.append(B.text())

    def stats(self, t, ring):
        rd = []; M = []; nq = 0
        for ks in range(12):
            x = ring[nq % 8]; nq += 1; c = ring[nq % 8]; nq += 1
            rd.append((len(M), ds_read('ds_read_b128', x, XO[ks & 3], (ks >> 2) * 256)))
            M.append(mfma16(GA, x, x, GA if ks else 0))
            rd.append((len(M), ds_read('ds_read_b128', c, CA[ks & 3], (ks >> 2) * 256)))
            M.append(mfma16(CX, c, x, CX if ks else 0))
        fill = {}
        self.place_reads(fill, rd, M, 5)
        Y = EMAX
        ex = [valu('v_cndmask_b32', T0, GA[0], GA[1], s(92, 2)), valu('v_cndmask_b32', T1, GA[2], GA[3], s(96, 2)),
              valu('v_add_f32', Y, CX[1], LSM[t]),
              valu('v_cndmask_b32', T0, T0, T1, s(94, 2)), valu('v_mul_f32', Y, sK[1], Y),
              valu('v_fma_f32', T0, CX[0], 2.0, T0), valu('v_add_f32', T0, T0, LSQ[t]),
              valu('v_mul_f32', T1, Y, Y), valu('v_fma_f32', T0, T0, sK[1], -T1), valu('v_max_f32', T0, 0, T0),
              valu('v_add_f32', T0, sK[2], T0), valu('v_rsq_f32', T0, T0),
              ds_write('ds_write_b32', RWR, Y, 256), ds_write('ds_write_b32', RWR, T0, 0)]
        return M, fill, ex

    def step(self, t, loads, sloads):
        A = self.A; o = self.o
        dbg = o.dump or ''
        fs = (lambda: self.stamp(fine=True)) if o.fine == t else (lambda: None)
        rd = []; M = []; nq = 0
        for g in range(4):
            for ks in range(12):
                x = RING[nq % 8]; nq += 1
                rd.append((len(M), ds_read('ds_read_b128', x, XA[ks & 3], g * 12288 + (ks >> 2) * 256)))
                M.append(mfma16(SACC[g], x, AFR[ks], SACC[g] if ks else 0))
        fill = {}
        self.place_reads(fill, rd, M, 6)
        fill[-1] += self.r_reads(0, RB[0]) + self.r_reads(1, RB[1])
        for g_ in sloads[:2]: fill[-1].extend(g_)
        spread_groups(fill, sloads[2:], 2, 4)
        for g in range(3):
            sm = self.softmax_group(t, g, RB[g & 1], first=(t == 0 and g == 0))
            if g < 2: sm += self.r_reads(g + 2, RB[g & 1])
            spread(fill, sm[:4], 12 * g + 9, 2)
            rest = sm[4:]
            per = -(-len(rest) // 10)
            spread(fill, rest, 12 * g + 13, per)
        fs()
        A(interleave(M, fill))
        fs()
        A(self.softmax_pk(t, 3, RB[1]))
        fs()
        lr = self.lab('rare'); lb = self.lab('back')
        A(valu('v_cmp_lt_f32', 'vcc', sK[3], EMAX))
        XTB = [[RING[3 * b + ct] for ct in range(3)] for b in range(2)]
        PB = [[RING[6], RING[7]], [RB[1][0], RB[1][1]]]
        ksteps = [('h', g) for g in range(4)] + ([('l', u) for u in range(2)] if t & 1 else [])
        def xreads(k, b):
            kind, g = ksteps[k]
            ad, off = (XT, g * 12288) if kind == 'h' else (LT, g * 24576)
            return [ds_read('ds_read_b64_tr_b16', XTB[b][ct][2 * r:2 * r + 2], ad[2 * ct + r], off) for ct in range(3) for r in range(2)]
        def preads(k, b):
            kind, g = ksteps[k]
            if kind == 'h': return [ds_read('ds_read_b128', PB[b][nu], PHR[g], nu * 4096) for nu in range(2)]
            return [ds_read('ds_read_b128', PB[b][nu], PLR[g], nu * 2048) for nu in range(2)]
        A(xreads(0, 0))
        A.line(f'    s_cbranch_vccnz {lr}')
        A.label(lb)
        self.rare_softmax(t, lr, lb)
        A(valu('v_add_f32', LSUM, LSUM, LST))
        if t & 1: A(self.pool_write())
        fs()
        A.barrier()
        fs()
        if dbg == f'step{t}':
            self.dump_lds(MISC, 16384); return
        upd = []
        if t < 3:
            for r in XA + XO: upd.append(valu('v_xor_b32', r, 0x10000, r))
            ck = [64, 96, 64][t]
            for r in CA: upd += [valu('v_xor_b32', r, ck, r), valu('v_add_u32', r, r, CD)]
        else: upd = self.epi_addr()
        FQ = RB[0][0]
        if t > 0: A(ds_read('ds_read_b128', FQ, FLA, 0))
        A(preads(0, 0))
        A(upd[:12]); upd = upd[12:]
        if t > 0:
            lr = self.lab('resc'); lb = self.lab('rback')
            A(valu('v_max3_u32', T2, FQ[0], FQ[1], FQ[2]), valu('v_max_u32', T2, T2, FQ[3]), readfirstlane(sT[1], T2),
              salu('s_cmp_eq_u32', sT[1], t + 1))
            A.line(f'    s_cbranch_scc1 {lr}')
            A.label(lb)
            self.rare_rescale(t, lr, lb)
        fs()
        M = []; fill = {}
        nk = len(ksteps)
        for k in range(nk):
            b = k & 1
            base = len(M)
            order = [(ct, nu) for ct in range(3) for nu in range(2)]
            for ct, nu in order:
                M.append(mfma32(UACC[ct][nu], XTB[b][ct], PB[b][nu], UACC[ct][nu] if (t or k) else 0))
            if k + 1 < nk:
                rr = preads(k + 1, b ^ 1) + xreads(k + 1, b ^ 1)
                spread(fill, rr, base, 2)
        n = len(M)
        spread(fill, upd, 4, 2)
        spread_groups(fill, loads, 1, 2)
        if t == 1: fill.setdefault(n - 10, []).append(self.wo_touch)
        if t == o.tab_step: fill.setdefault(3, []).append(self.table_load)
        if t < 3:
            spread(fill, [valu('v_xor_b32', r, 0x10000, r) for r in XT], 16, 3)
            last = {k - (n - 6): fill.pop(k) for k in list(fill) if k >= n - 6}
            A(interleave(M[:n - 6], fill))
            A.wait_vm(f'x{t+1}')
            SM, sfill, ex = self.stats(t + 1, [RING[0], RING[1], RING[2], RING[6], RING[7], SACC[0], SACC[1], SACC[2]])
            if t == 1:
                u2 = []
                for r in LT: u2 += [valu('v_xor_b32', r, 32, r), valu('v_add_u32', r, 1536, r)]
                spread(sfill, u2, 2, 1)
            A(interleave(SM, sfill))
            spread(last, ex, 1, 4)
            A(interleave(M[n - 6:], last))
        else:
            A(interleave(M, fill))
        fs()
        if t == o.tab_step: self.table_use()
        fs()
        if t < 3: A.barrier()
        fs()
        if t == o.tab_step: self.table_use2()
        self.stamp()

    def wo_touch(self, A):
        srd(A, SRD_X, PWO, 294912)
        A(valu('v_min_u32', T0, 17, vL), salu('s_mul_i32', sT[0], sW, 18), valu('v_add_u32', T0, sT[0], T0), valu('v_lshlrev_b32', T0, 7, T0),
          salu('s_lshr_b32', sT[0], sB, 3), salu('s_mul_i32', sT[0], sT[0], 9216),
          bload('buffer_load_dword', SLO[0][0], T0, SRD_X, sT[0], 0, tag='junk'))

    def table_load(self, A):
        TB = RB[0][1]
        A(valu('v_lshlrev_b32', TB[2], 2, vTID), salu('s_mov_b32', sSO, WS_TAB),
          bload('buffer_load_dword', TB[0], TB[2], SRD_WS, sSO, 0, 'sc1', tag='tb'))

    def table_use(self):
        A = self.A
        TB = RB[0][1]
        lr = self.lab('tb'); ls = self.lab('tbs'); lb = self.lab('tbb')
        A.label(lr)
        A(valu('v_xor_b32', T0, sTAG, TB[0]), valu('v_cmp_lt_u32', 'vcc', 15, T0), salu('s_cmp_lg_u64', 'vcc', 0))
        A.line(f'    s_cbranch_scc1 {ls}')
        A.label(lb)
        B = Asm(); B.label(ls); B.line('    s_sleep 2')
        B(salu('s_mov_b32', sSO, WS_TAB), bload('buffer_load_dword', TB[0], TB[2], SRD_WS, sSO, 0, 'sc1'))
        B.wait_vm(); self.spin_guard(B, lr); B.line(f'    s_branch {lb}')
        self.tail.append(B.text())
        A(valu('v_and_b32', TB[0], 15, TB[0]), valu('v_cmp_eq_u32', sM2, sXCC, TB[0]),
          valu('v_mov_b32', T1, 1), valu('v_lshlrev_b32', T1, TB[0], T1))
        for sh in ('row_ror:1', 'row_ror:2', 'row_ror:4', 'row_ror:8'):
            A(valu('v_or_b32_dpp', T1, T1, T1, mods=sh))
        self.allreduce_g(A, 'v_or_b32', T1, T2)
        A(salu('s_bcnt1_i32_b64', sT[0], sM2), valu('v_mov_b32', T0, sT[0]), salu('s_lshl_b32', sT[1], sW, 3), valu('v_mov_b32', T2, sT[1]))
        A(valu('v_mov_b32', TB[2], T0), valu('v_mov_b32', TB[3], T1), ds_write('ds_write_b64', T2, TB[2:4], CNT))

    def table_use2(self):
        A = self.A
        Q0 = RB[0][0]; Q1 = RB[0][1]
        A(valu('v_mov_b32', T0, 0), ds_read('ds_read_b128', Q0, T0, CNT), ds_read('ds_read_b128', Q1, T0, CNT + 16))
        A(readfirstlane(sT[0], Q0[0]), readfirstlane(sT[1], Q0[2]), readfirstlane(sT[2], Q1[0]), readfirstlane(sT[3], Q1[2]),
          valu('v_or3_b32', T1, Q0[1], Q0[3], Q1[1]), valu('v_or_b32', T1, T1, Q1[3]), readfirstlane(sGM, T1))
        A(salu('s_add_u32', sT[1], sT[1], sT[0]), salu('s_add_u32', sT[2], sT[2], sT[1]), salu('s_add_u32', sN, sT[3], sT[2]),
          salu('s_cmp_eq_u32', sW, 1), salu('s_cselect_b32', sP1, sT[0], 0), salu('s_cmp_eq_u32', sW, 2), salu('s_cselect_b32', sP1, sT[1], sP1),
          salu('s_cmp_eq_u32', sW, 3), salu('s_cselect_b32', sP1, sT[2], sP1))
        A(Ins(f'v_mbcnt_lo_u32_b32 {T0}, {sM2[0]}, 0', 'valu', regset([sM2]), regset([T0])),
          Ins(f'v_mbcnt_hi_u32_b32 {T0}, {sM2[1]}, {T0}', 'valu', regset([sM2, T0]), regset([T0])),
          valu('v_add_u32', T0, sP1, T0), valu('v_lshlrev_b32', T1, 2, T0), valu('v_add_u32', T1, MEMB, T1),
          valu('v_lshlrev_b32', T2, 2, vL), valu('v_add_u32', T2, DUM, T2), valu('v_cndmask_b32', T1, T2, T1, sM2),
          ds_write('ds_write_b32', T1, vTID, 0))
        A(valu('v_cmp_eq_u32', 'vcc', sB, vTID), valu('v_mov_b32', T1, CNT + 32), valu('v_cndmask_b32', T1, T2, T1),
          ds_write('ds_write_b32', T1, T0, 0))

    def flat_reg(self, dst):
        return [valu('v_and_b32', T0, 15, vL),
                valu('v_lshrrev_b32', T1, 2, T0), valu('v_lshrrev_b32', dst, 3, T0), valu('v_xor_b32', dst, T1, dst),
                valu('v_and_b32', dst, 1, dst), valu('v_lshlrev_b32', dst, 3, dst), valu('v_and_b32', T1, 1, T1), valu('v_or_b32', dst, dst, T1),
                valu('v_and_b32', T1, 1, T0), valu('v_lshl_or_b32', dst, T1, 2, dst), valu('v_and_b32', T1, 2, T0), valu('v_or_b32', dst, dst, T1)]

    def epi_addr(self):
        UW = XA + XO[:2]; UA = CA; F = XO[2]; RB_ = XO[3]
        L = self.flat_reg(F)
        L += [valu('v_and_b32', T0, 31, vL), valu('v_mul_u32_u24', RB_, 768, T0),
              valu('v_lshrrev_b32', T0, 5, vL), salu('s_mul_i32', sT[0], sW, 12), valu('v_add_u32', T0, sT[0], T0)]
        for i in range(6):
            L += [valu('v_add_u32', T1, 2 * i, T0), valu('v_xor_b32', T1, T1, F), valu('v_lshl_add_u32', UW[i], T1, 4, RB_)]
        L += [valu('v_lshrrev_b32', T1, 4, vL), valu('v_xor_b32', F, F, T1), valu('v_lshlrev_b32', F, 4, F),
              valu('v_and_b32', T0, 15, vL), valu('v_mul_u32_u24', T0, 768, T0), salu('s_mul_i32', sT[0], sW, 12288), valu('v_add_u32', T0, sT[0], T0)]
        for j in range(4): L += [valu('v_xor_b32', T1, 64 * j, F), valu('v_add_u32', UA[j], T0, T1)]
        t_ = PHW[0]
        L += [valu('v_mov_b32', t_, LSUM), permswap('v_permlane16_swap_b32', t_, LSUM), valu('v_add_f32', LSUM, LSUM, t_),
              valu('v_mov_b32', t_, LSUM), permswap('v_permlane32_swap_b32', t_, LSUM), valu('v_add_f32', LSUM, LSUM, t_),
              valu('v_and_b32', T0, 15, vL), valu('v_lshlrev_b32', T0, 2, T0), salu('s_lshl_b32', sT[0], sW, 6), valu('v_add_u32', T0, sT[0], T0),
              ds_write('ds_write_b32', T0, MREF, MLM), ds_write('ds_write_b32', T0, LSUM, MLL)]
        return L

    def tail_regs(self):
        t = type('T', (), {})()
        t.TG = v(240); t.NEG = v(241); t.MO = v(242); t.QV = v(243); t.QO = v(239)
        t.WO = [v(2 + 4 * j, 4) for j in range(6)]
        t.OF = [v(26 + i) for i in range(4)]; t.OB = [v(30), v(31)]; t.PI = v(32); t.GO = v(33); t.PB = v(34); t.GB = v(35)
        t.ACC = [v(40 + i) for i in range(6)]; t.MX = v(46); t.LX = v(47)
        t.MS = [v(136 + i) for i in range(4)]; t.LS = [v(140 + i) for i in range(4)]
        t.G = [v(176 + 4 * i, 4) for i in range(4)]
        t.WF = [v(88 + i) for i in range(36)]
        t.U = v(144, 2)
        return t

    def prepA(self, t):
        L = []
        for j in range(4):
            L += [salu('s_add_u32', sT[0], sC0, 8 * j), valu('v_add_u32', T0, sT[0], t.PI), valu('v_cmp_gt_u32', VAL[j], sN, T0),
                  valu('v_min_u32', T0, 255, T0), valu('v_lshlrev_b32', T0, 2, T0), ds_read('ds_read_b32', t.OF[j], T0, MEMB)]
        L += [valu('v_mov_b32', T1, 0x7ffffff0)]
        for j in range(4):
            L += [valu('v_lshl_add_u32', t.OF[j], t.OF[j], 14, t.GO), valu('v_cndmask_b32', t.OF[j], T1, t.OF[j], VAL[j])]
        L += [salu('s_lshl_b32', sSOA, sROW, 8), salu('s_add_u32', sSOA, sSOA, WS_MA)]
        return L

    def prepB(self, t, g0):
        L = [valu('v_mov_b32', T2, 0x7ffffff0)]
        for j in range(2):
            L += [valu('v_add_u32', T0, g0 + 4 * j, t.PB), valu('v_lshrrev_b32', T1, T0, sGM), valu('v_and_b32', T1, 1, T1),
                  valu('v_cmp_eq_u32', VALB[j], 1, T1), valu('v_lshl_add_u32', t.OB[j], T0, 8, t.GB),
                  valu('v_cndmask_b32', t.OB[j], T2, t.OB[j], VALB[j])]
        return L

    def epilogue(self):
        A = self.A; o = self.o
        t = self.tail_regs()
        UW = XA + XO[:2]; UA = CA
        PK = [RING[i] for i in range(4)]
        late = self.wv_loads(self.wv_next, 72)
        if self.wv_next == 0: self.check_flagV(A)
        n = 0
        for ct in range(3):
            for nu in range(2):
                for u in range(2):
                    P = PK[n % 4]; n += 1; x = UACC[ct][nu]
                    for e in range(4): A(valu('v_cvt_pk_bf16_f32', P[e], x[8 * u + 2 * e], x[8 * u + 2 * e + 1]))
                    A(ds_write('ds_write_b128', UW[2 * ct + u], P, nu * 24576))
                    if late and n % 2 == 0: A(late.pop(0))
        A.barrier()
        self.stamp()
        UQ = [v(160 + 4 * i, 4) for i in range(12)]
        D = [v(208 + 4 * j, 4) for j in range(6)]
        M4 = v(232, 4); L4 = v(244, 4); X4 = v(248, 4)
        for ks in range(12): A(ds_read('ds_read_b128', UQ[ks], UA[ks & 3], (ks >> 2) * 256))
        A(late)
        M = [mfma16(D[j], UQ[ks], self.wvq[6 * ks + j], D[j] if ks else 0) for ks in range(12) for j in range(6)]
        TG = t.TG
        ex = [valu('v_lshrrev_b32', t.PB, 4, vL), valu('v_lshlrev_b32', T0, 4, t.PB), salu('s_lshl_b32', sT[0], sW, 6), valu('v_add_u32', T0, sT[0], T0),
              ds_read('ds_read_b128', M4, T0, MLM), ds_read('ds_read_b128', L4, T0, MLL),
              valu('v_mov_b32', T0, 0), ds_read('ds_read_b32', T2, T0, CNT + 32)]
        S_ = Asm(); srd(S_, SRD_X, PWO, 294912); srd(S_, SRD_Y, PQ, 12288)
        def srds(A):
            srd(A, SRD_X, PWO, 294912); srd(A, SRD_Y, PQ, 12288); srd(A, SRD_Z, POUT, 12288)
        ex += [srds]
        ex += [valu('v_and_b32', t.GB, 15, vL), valu('v_mul_u32_u24', T0, 768, t.GB), valu('v_mul_u32_u24', T1, 12, t.PB),
               valu('v_add_u32', t.MO, T0, T1), salu('s_mul_i32', sSO, sW, 96 * 768), salu('s_and_b32', sT[0], sB, 15), salu('s_mul_i32', sT[0], sT[0], 48),
               salu('s_add_u32', sSO, sSO, sT[0]), salu('s_lshr_b32', sT[1], sB, 4), salu('s_mul_i32', sT[2], sT[1], 768), salu('s_add_u32', sP1, sT[2], sT[0]),
               salu('s_lshl_b32', sT[0], sW, 4), salu('s_add_u32', sT[0], sT[0], sT[1]), salu('s_lshl_b32', sSOB, sT[0], 12), salu('s_add_u32', sSOB, sSOB, WS_MB),
               readfirstlane(sRANK, T2), valu('v_lshlrev_b32', t.QO, 2, vL), valu('v_lshlrev_b32', t.GB, 4, t.GB)]
        wo = [[salu('s_add_u32', sSO2, sSO, j * 16 * 768), bload('buffer_load_dwordx3', R('v', t.WO[j].i, 3), t.MO, SRD_X, sSO2, 0, tag='wo')] for j in range(6)]
        wo.append([bload('buffer_load_dword', t.QV, t.QO, SRD_Y, sP1, 0, tag='wo')])
        ex2 = [valu('v_mov_b32', TG, sTAG), valu('v_lshlrev_b32', T1, 16, TG), valu('v_and_b32', TG, 0xffff0000, TG),
               salu('s_mov_b32', sM[0], 0xaaaaaaaa), salu('s_mov_b32', sM[1], 0xaaaaaaaa),
               valu('v_cndmask_b32', TG, T1, TG, sM), valu('v_mov_b32', t.NEG, -3.0e38)]
        for i in range(4):
            ex2 += [valu('v_cndmask_b32', X4[i], M4[i], L4[i], s(94, 2)), valu('v_lshrrev_b32', T1, 16, X4[i]), valu('v_and_b32', X4[i], 0xffff, X4[i]),
                    valu('v_cndmask_b32', X4[i], T1, X4[i], sM), valu('v_or_b32', X4[i], X4[i], TG)]
        ex2 += [salu('s_lshr_b32', sT[0], sW, 1), salu('s_mul_i32', sT[0], sT[0], sN), salu('s_add_u32', sROW, sRANK, sT[0]), salu('s_mov_b32', sC0, 0),
                valu('v_lshrrev_b32', t.PI, 3, vL), valu('v_and_b32', T0, 7, vL), valu('v_lshlrev_b32', t.GO, 4, T0),
                salu('s_and_b32', sT[0], sW, 1), salu('s_lshl_b32', sT[0], sT[0], 7), valu('v_add_u32', t.GO, sT[0], t.GO)]
        ex2 += self.prepA(t) + self.prepB(t, 0)
        fill = {}
        sl = spread(fill, ex, 0, 2)
        sl2 = spread_groups(fill, wo, sl + 1, 4)
        spread(fill, ex2, sl, 2)
        fill.setdefault(max(sl2, 66), []).extend([valu('v_lshl_add_u32', t.MO, t.PB, 10, t.GB), salu('s_lshl_b32', sSO, sB, 14), salu('s_lshl_b32', sT[0], sW, 12),
                                                  salu('s_add_u32', sSO, sSO, sT[0]), salu('s_add_u32', sSO, sSO, WS_MA)])
        A(interleave(M, fill))
        OQ = [v(160 + 4 * i, 4) for i in range(4)]
        for i in range(4):
            for e in range(3): A(valu('v_cvt_pk_bf16_f32', OQ[i][e], D[2 * e][i], D[2 * e + 1][i]))
            A(valu('v_mov_b32', OQ[i][3], X4[i]))
            A(bstore('buffer_store_dwordx4', OQ[i], t.MO, SRD_WS, sSO, i * 256, '', tag='ma'))
        self.stamp()
        self.tail_vm = [e for e in A.vm if e[0] in ('wo', 'ma')]

    def wavemax(self, A, x, with8):
        if with8: A(valu('v_max_f32_dpp', x, x, x, mods='row_ror:8'))
        self.allreduce_g(A, 'v_max_f32', x, T2)

    def merge(self, A, t, n, valid, first, with8):
        G, MS, LS, ACC, MX, LX = t.G, t.MS, t.LS, t.ACC, t.MX, t.LX
        for i in range(n):
            A(valu('v_and_b32', T0, 0xffff, G[i][3]))
            A(valu('v_mov_b32_dpp', MS[i], T0, mods='quad_perm:[0,0,0,0]'), valu('v_mov_b32_dpp', T1, T0, mods='quad_perm:[1,1,1,1]'),
              valu('v_mov_b32_dpp', LS[i], T0, mods='quad_perm:[2,2,2,2]'), valu('v_mov_b32_dpp', T2, T0, mods='quad_perm:[3,3,3,3]'),
              valu('v_lshl_or_b32', MS[i], MS[i], 16, T1), valu('v_lshl_or_b32', LS[i], LS[i], 16, T2),
              valu('v_cndmask_b32', MS[i], t.NEG, MS[i], valid[i]))
        W = MX if first else t.U[0]
        if n == 4: A(valu('v_max3_f32', W, MS[0], MS[1], MS[2]), valu('v_max_f32', W, W, MS[3]))
        else: A(valu('v_max_f32', W, MS[0], MS[1]))
        self.wavemax(A, W, with8)
        if not first:
            A(valu('v_max_f32', W, W, MX), valu('v_sub_f32', T1, MX, W), valu('v_exp_f32', T1, T1), valu('v_mov_b32', MX, W), valu('v_mul_f32', LX, LX, T1))
            for e in range(6): A(valu('v_mul_f32', ACC[e], ACC[e], T1))
        for i in range(n): A(valu('v_sub_f32', MS[i], MS[i], MX))
        for i in range(n): A(valu('v_exp_f32', MS[i], MS[i]))
        for i in range(n):
            z = first and i == 0
            A(valu('v_mul_f32', LX, MS[i], LS[i]) if z else valu('v_fma_f32', LX, MS[i], LS[i], LX))
            wp = R('v', MS[i].i & ~1, 2); ws_ = MS[i].i & 1
            for e in range(3):
                ap = R('v', ACC[2 * e].i, 2)
                A(valu('v_lshlrev_b32', t.U[0], 16, G[i][e]), valu('v_and_b32', t.U[1], 0xffff0000, G[i][e]))
                if z: A(Ins(f'v_pk_mul_f32 {ap}, {t.U}, {wp} op_sel:[0,{ws_}] op_sel_hi:[1,{ws_}]', 'valu', regset([t.U, wp]), regset([ap])))
                else: A(Ins(f'v_pk_fma_f32 {ap}, {t.U}, {wp}, {ap} op_sel:[0,{ws_},0] op_sel_hi:[1,{ws_},1]', 'valu', regset([t.U, wp, ap]), regset([ap])))

    def rs(self, A, t):
        a = t.ACC; L = t.LX
        A(valu('v_mov_b32', T0, L), permswap('v_permlane32_swap_b32', a[0], a[1]), permswap('v_permlane32_swap_b32', a[2], a[3]),
          permswap('v_permlane32_swap_b32', a[4], a[5]), permswap('v_permlane32_swap_b32', T0, L),
          valu('v_add_f32', a[0], a[0], a[1]), valu('v_add_f32', a[2], a[2], a[3]), valu('v_add_f32', a[4], a[4], a[5]), valu('v_add_f32', L, L, T0),
          permswap('v_permlane16_swap_b32', a[0], a[2]), permswap('v_permlane16_swap_b32', a[4], L),
          valu('v_add_f32', a[0], a[0], a[2]), valu('v_add_f32', a[4], a[4], L))

    def poll(self, A, t, n, offs, valid, soff, between=None):
        lp = self.lab('pl'); lc = self.lab('pc')
        def loads(B):
            for j in range(n): B(bload('buffer_load_dwordx4', t.G[j], offs[j], SRD_WS, soff, 0, 'sc1', tag='g'))
        loads(A)
        if between: between(A)
        A.label(lc)
        A.wait_vm()
        for j in range(n):
            A(valu('v_xor_b32', T0, t.G[j][3], t.TG), valu('v_cmp_lt_u32', 'vcc', 0xffff, T0),
              salu('s_and_b64', sM2 if j == 0 else sSV, 'vcc', valid[j]))
            if j: A(salu('s_or_b64', sM2, sM2, sSV))
        A.line(f'    s_cbranch_scc1 {lp}')
        ld = self.lab('pd'); A.label(ld)
        B = Asm(); B.label(lp)
        B(salu('s_add_u32', sCNT, sCNT, 1), salu('s_cmp_ge_u32', sCNT, 400000)); B.line(f'    s_cbranch_scc1 {ld}')
        loads(B); B.line(f'    s_branch {lc}')
        self.tail.append(B.text())

    def tail_phase(self):
        A = self.A; o = self.o
        t = self.tail_regs()
        A.reset_state(self.tail_vm, []); A.nop(2)
        def unpack(B):
            for j in range(6):
                for e in range(3):
                    B(valu('v_lshlrev_b32', t.WF[6 * j + 2 * e], 16, t.WO[j][e]), valu('v_and_b32', t.WF[6 * j + 2 * e + 1], 0xffff0000, t.WO[j][e]))
        A(salu('s_cmp_ge_u32', sROW, 64)); A.line('    s_cbranch_scc1 L_norow')
        B = Asm(); B.label('L_norow'); B.line('    s_waitcnt vmcnt(0)'); unpack(B); B.line('    s_branch L_stageB'); self.tail.append(B.text())
        self.poll(A, t, 4, t.OF, VAL, sSOA, unpack)
        self.merge(A, t, 4, VAL, True, True)
        A(salu('s_cmp_gt_u32', sN, 32)); A.line('    s_cbranch_scc1 L_more')
        A.label('L_rowdone')
        self.rs(A, t)
        a = t.ACC; OQ = t.G[0]
        A(valu('v_add_f32_dpp', a[0], a[0], a[0], mods='row_ror:8'), valu('v_add_f32_dpp', a[4], a[4], a[4], mods='row_ror:8'),
          valu('v_mov_b32', a[1], a[0]), valu('v_mov_b32', a[5], a[4]),
          salu('s_lshl_b32', sSO, sROW, 12), salu('s_lshl_b32', sT[0], sXCC, 8), salu('s_add_u32', sSO, sSO, sT[0]), salu('s_add_u32', sSO, sSO, WS_MB),
          permswap('v_permlane32_swap_b32', a[1], a[0]), permswap('v_permlane32_swap_b32', a[5], a[4]),
          valu('v_cvt_pk_bf16_f32', OQ[1], a[1], a[0]), valu('v_cvt_pk_bf16_f32', OQ[2], a[5], a[4]), valu('v_mov_b32', a[3], a[5]),
          valu('v_mov_b32', OQ[0], OQ[1]), permswap('v_permlane16_swap_b32', a[3], a[5]), permswap('v_permlane16_swap_b32', OQ[0], OQ[1]),
          valu('v_cndmask_b32', T0, t.MX, a[5], s(94, 2)), valu('v_lshrrev_b32', T1, 16, T0), valu('v_and_b32', T0, 0xffff, T0),
          valu('v_cndmask_b32', T0, T1, T0, sM), valu('v_or_b32', OQ[3], T0, t.TG), salu('s_mov_b64', 'exec', 0xff))
        A(bstore('buffer_store_dwordx4', OQ, t.GO, SRD_WS, sSO, 0, 'sc1'))
        A(salu('s_mov_b64', 'exec', -1), salu('s_lshl_b32', sT[0], sN, 1), salu('s_add_u32', sROW, sROW, sT[0]), salu('s_cmp_lt_u32', sROW, 64))
        A.line('    s_cbranch_scc1 L_nextrow')
        save = self.A
        B = Asm(); self.A = B
        B.label('L_nextrow'); B.line('    s_waitcnt vmcnt(0)'); B.nop(4)
        B(salu('s_mov_b32', sC0, 0)); B(self.prepA(t)); self.poll(B, t, 4, t.OF, VAL, sSOA); self.merge(B, t, 4, VAL, True, True)
        B.label('L_more'); B.nop(4)
        B(salu('s_add_u32', sC0, sC0, 32), salu('s_cmp_ge_u32', sC0, sN)); B.line('    s_cbranch_scc1 L_rowdone')
        B(self.prepA(t)); self.poll(B, t, 4, t.OF, VAL, sSOA); self.merge(B, t, 4, VAL, False, True)
        B.line('    s_branch L_more')
        self.tail.append(B.text()); self.A = save
        A.label('L_stageB')
        self.stamp()
        self.poll(A, t, 2, t.OB, VALB, sSOB)
        self.merge(A, t, 2, VALB, True, False)
        A(salu('s_cmp_ge_u32', sGM, 256)); A.line('    s_cbranch_scc1 L_moreB')
        A.label('L_fin')
        B = Asm(); B.label('L_moreB'); B.nop(4)
        B(self.prepB(t, 8)); self.poll(B, t, 2, t.OB, VALB, sSOB); self.merge(B, t, 2, VALB, False, False); B.nop(4)
        B.line('    s_branch L_fin'); self.tail.append(B.text())
        self.rs(A, t)
        L = t.LX
        A(valu('v_mov_b32', a[1], a[0]), valu('v_mov_b32', a[5], a[4]),
          valu('v_mul_u32_u24', T0, 24, t.PB), salu('s_mul_i32', sT[0], sW, 96), salu('s_add_u32', sT[0], sT[0], OUTR),
          permswap('v_permlane32_swap_b32', a[1], a[0]), permswap('v_permlane32_swap_b32', a[5], a[4]),
          valu('v_mov_b32', a[2], a[1]), valu('v_mov_b32', a[3], a[0]), valu('v_mov_b32', L, a[5]), valu('v_mov_b32', T2, a[4]),
          permswap('v_permlane16_swap_b32', a[1], a[2]), permswap('v_permlane16_swap_b32', a[0], a[3]),
          permswap('v_permlane16_swap_b32', a[5], L), permswap('v_permlane16_swap_b32', a[4], T2),
          valu('v_rcp_f32', L, L), valu('v_add_u32', T0, sT[0], T0), valu('v_mov_b32', T1, DUM), valu('v_cmp_eq_u32', 'vcc', 0, t.GB))
        C = [a[1], a[0], a[2], a[3], a[5], a[4]]
        for e in range(6): A(valu('v_mul_f32', C[e], C[e], L))
        A(valu('v_cndmask_b32', T0, T1, T0))
        for e in range(3):
            A(valu('v_cvt_pk_bf16_f32', T1, C[2 * e], C[2 * e + 1]), valu('v_lshlrev_b32', C[2 * e], 16, T1),
              valu('v_and_b32', C[2 * e + 1], 0xffff0000, T1))
        O = [v(136 + i) for i in range(6)]
        for j in range(6):
            cp = R('v', C[j].i & ~1, 2); cs = C[j].i & 1
            for n in range(3):
                op_ = R('v', O[2 * n].i, 2); wp = R('v', t.WF[6 * j + 2 * n].i, 2)
                if j == 0: A(Ins(f'v_pk_mul_f32 {op_}, {wp}, {cp} op_sel:[0,{cs}] op_sel_hi:[1,{cs}]', 'valu', regset([wp, cp]), regset([op_])))
                else: A(Ins(f'v_pk_fma_f32 {op_}, {wp}, {cp}, {op_} op_sel:[0,{cs},0] op_sel_hi:[1,{cs},1]', 'valu', regset([wp, cp, op_]), regset([op_])))
        for sh in ('row_ror:1', 'row_ror:2', 'row_ror:4', 'row_ror:8'):
            for n in range(6): A(valu('v_add_f32_dpp', O[n], O[n], O[n], mods=sh))
        for n in range(3): A(ds_write('ds_write_b64', T0, R('v', O[2 * n].i, 2), 8 * n))
        A(valu('v_min_u32', T0, 11, vL), valu('v_lshlrev_b32', T0, 3, T0), valu('v_lshlrev_b32', a[0], 16, t.QV), valu('v_and_b32', a[1], 0xffff0000, t.QV))
        A.barrier()
        A(salu('s_cmp_lg_u32', sW, 0)); A.line('    s_cbranch_scc1 L_out')
        P = [v(160 + 2 * i, 2) for i in range(4)]
        for w in range(4): A(ds_read('ds_read_b64', P[w], T0, OUTR + 96 * w))
        A(Ins(f'v_pk_add_f32 {P[0]}, {P[0]}, {P[1]}', 'valu', regset([P[0], P[1]]), regset([P[0]])),
          Ins(f'v_pk_add_f32 {P[2]}, {P[2]}, {P[3]}', 'valu', regset([P[2], P[3]]), regset([P[2]])),
          Ins(f'v_pk_add_f32 {P[0]}, {P[0]}, {P[2]}', 'valu', regset([P[0], P[2]]), regset([P[0]])))
        A(valu('v_cvt_pk_bf16_f32', T1, P[0][0], P[0][1]), valu('v_lshlrev_b32', P[0][0], 16, T1), valu('v_and_b32', P[0][1], 0xffff0000, T1),
          valu('v_add_f32', P[0][0], P[0][0], a[0]), valu('v_add_f32', P[0][1], P[0][1], a[1]), salu('s_mov_b64', 'exec', 0xfff),
          valu('v_cvt_pk_bf16_f32', T0, P[0][0], P[0][1]))
        A(bstore('buffer_store_dword', T0, t.QO, SRD_Z, sP1, 0))
        A(salu('s_mov_b64', 'exec', -1))
        A.label('L_out')
        self.stamp()
        self.stamp_out()
        A.label('L_end')
        A.line('    s_endpgm')

    def build(self):
        self.prologue()
        A = self.A
        body = A.out
        txt = '\n'.join(body) + '\n' + ''.join(self.tail) + 'L_codeend:\n    s_endpgm\n'
        ninstr = sum(1 for l in txt.split('\n') if l.startswith('    ') and not l.strip().startswith(';'))
        self.ninstr = ninstr
        pad = f'.fill {self.o.pad // 4}, 4, 0xbf810000\n' if self.o.pad else ''
        hdr = open('standalone__detection_seg_mask2former__vision.s.ref').read().split('; Override launch')[0]
        s_ = hdr + f'; @launch grid=(256,1,1) block=(256,1,1) lds={LDS_BYTES}\n' + '.amdgcn_target "amdgcn-amd-amdhsa--gfx950"\n.text\n' + txt + pad
        s_ += f'''.section .rodata,"a"
.p2align 6
.amdhsa_kernel {KN}
  .amdhsa_next_free_vgpr 512
  .amdhsa_next_free_sgpr 102
  .amdhsa_accum_offset 256
  .amdhsa_group_segment_fixed_size 0
  .amdhsa_kernarg_size 96
  .amdhsa_user_sgpr_count 2
  .amdhsa_user_sgpr_kernarg_segment_ptr 1
  .amdhsa_system_sgpr_workgroup_id_x 1
  .amdhsa_float_denorm_mode_32 3
.end_amdhsa_kernel
'''
        return s_


def main():
    ap = argparse.ArgumentParser()
    ap.add_argument('-o', default='k.s')
    ap.add_argument('--dump', default='')
    ap.add_argument('--stamps', action='store_true')
    ap.add_argument('--cyc', action='store_true')
    ap.add_argument('--fine', type=int, default=-1)
    ap.add_argument('--probe', type=int, default=-1)
    ap.add_argument('--probe-wg', type=int, default=16)
    ap.add_argument('--probe-k', type=int, default=100)
    ap.add_argument('--probe-n', type=int, default=1)
    ap.add_argument('--probe-wb', type=int, default=0)
    ap.add_argument('--stampw', type=int, default=0)
    ap.add_argument('--npre-late', type=int, default=2)
    ap.add_argument('--npre-prod', type=int, default=0)
    ap.add_argument('--x1-slot', type=int, default=38)
    ap.add_argument('--pv-late', type=int, default=0)
    ap.add_argument('--kflag', type=int, default=4)
    ap.add_argument('--plan-e', type=eval, default=[(0,0),(0,16),(0,12),(14,18)])
    ap.add_argument('--plan-l', type=eval, default=[(0,12),(0,16),(0,12),(12,18)])
    ap.add_argument('--tab-step', type=int, default=2)
    ap.add_argument('--fakegrp', type=int, default=0)
    ap.add_argument('--pf-lines', type=int, default=17)
    ap.add_argument('--pad', type=int, default=0)
    o = ap.parse_args()
    g = Gen(o)
    t = g.build()
    open(o.o, 'w').write(t)
    print(f'{o.o}: {g.ninstr} instrs, {g.A.nops} nops', file=sys.stderr)

if __name__ == '__main__':
    main()
```

```python
N = "standalone__detection_seg_mask2former__vision_kernel"
hdr = '.amdgcn_target "amdgcn-amd-amdhsa--gfx950"\n.text\n'
def desc(name, vg=16, sg=48, acc=None):
    return f""".p2align 6
.amdhsa_kernel {name}
  .amdhsa_next_free_vgpr {vg}
  .amdhsa_next_free_sgpr {sg}
  .amdhsa_accum_offset {acc or min(vg,256)}
  .amdhsa_group_segment_fixed_size 0
  .amdhsa_kernarg_size 96
  .amdhsa_user_sgpr_count 2
  .amdhsa_user_sgpr_kernarg_segment_ptr 1
  .amdhsa_system_sgpr_workgroup_id_x 1
.end_amdhsa_kernel"""
def head(name): return f".globl {name}\n.p2align 8\n.type {name},@function\n{name}:"
def stamp(i):
    return f"s_memrealtime s[{32+2*i}:{33+2*i}]"
def stamp_out(n):
    L = ["s_waitcnt lgkmcnt(0)", "v_cmp_eq_u32 vcc, 0, v0", "s_and_saveexec_b64 s[28:29], vcc", "s_cbranch_execz L_nostamp",
         "s_load_dwordx2 s[24:25], s[0:1], 88", "s_waitcnt lgkmcnt(0)", "s_add_u32 s24, s24, 0x8000000", "s_addc_u32 s25, s25, 0",
         "s_mov_b32 s26, 0x100000", "s_mov_b32 s27, 0x20000", "s_lshl_b32 s3, s2, 7", "v_mov_b32 v1, s3"]
    for i in range(n):
        L += [f"v_mov_b32 v2, s{32+2*i}", f"v_mov_b32 v3, s{33+2*i}", f"buffer_store_dwordx2 v[2:3], v1, s[24:27], 0 offen offset:{8*i}", "s_nop 1"]
    L += ["L_nostamp:"]
    return "\n".join(L)
def build(fn, launches, bodies, descs):
    s = "; microbench\n" + "\n".join(launches) + "\n" + hdr + "\n".join(bodies) + '\n.section .rodata,"a"\n' + "\n".join(descs) + "\n"
    open(fn, 'w').write(s)
def empty(name): return head(name) + "\ns_endpgm"

def stream_reg(name, nbuf=24, nt=False):
    L = [head(name), stamp(0)]
    L.append("s_cmp_ge_u32 s2, 256\ns_cbranch_scc1 L_done")
    L.append("s_load_dwordx4 s[4:7], s[0:1], 8\ns_waitcnt lgkmcnt(0)")
    L.append("s_mov_b32 s8, s4\ns_mov_b32 s9, s5\ns_mov_b32 s10, 50331648\ns_mov_b32 s11, 0x20000")
    L.append("s_mov_b32 s12, s6\ns_mov_b32 s13, s7\ns_mov_b32 s14, 12582912\ns_mov_b32 s15, 0x20000")
    L.append("v_lshlrev_b32 v1, 4, v0")
    L.append("s_mul_i32 s16, s2, 196608\ns_mul_i32 s17, s2, 49152")
    f = " nt" if nt else ""
    L.append(stamp(1))
    for i in range(60):
        j = i % nbuf
        if i >= nbuf: L.append(f"s_waitcnt vmcnt({nbuf-1})")
        if i < 12: L.append(f"buffer_load_dwordx4 v[{4+4*j}:{7+4*j}], v1, s[12:15], s17 offen{f}\ns_add_u32 s17, s17, 4096")
        else: L.append(f"buffer_load_dwordx4 v[{4+4*j}:{7+4*j}], v1, s[8:11], s16 offen{f}\ns_add_u32 s16, s16, 4096")
        if i == nbuf - 1: L.append(stamp(2))
    L.append("s_waitcnt vmcnt(0)")
    L.append(stamp(3))
    L.append(stamp_out(4))
    L.append("L_done:\ns_endpgm")
    return "\n".join(L)

def stream_lds(name, nbuf=24, nt=False):
    L = [head(name), stamp(0)]
    L.append("s_cmp_ge_u32 s2, 256\ns_cbranch_scc1 L_done")
    L.append("s_load_dwordx4 s[4:7], s[0:1], 8\ns_waitcnt lgkmcnt(0)")
    L.append("s_mov_b32 s8, s4\ns_mov_b32 s9, s5\ns_mov_b32 s10, 50331648\ns_mov_b32 s11, 0x20000")
    L.append("s_mov_b32 s12, s6\ns_mov_b32 s13, s7\ns_mov_b32 s14, 12582912\ns_mov_b32 s15, 0x20000")
    L.append("v_lshlrev_b32 v1, 4, v0")
    L.append("v_lshrrev_b32 v2, 6, v0\ns_nop 1\nv_readfirstlane_b32 s18, v2\ns_lshl_b32 s18, s18, 10")
    L.append("s_mul_i32 s16, s2, 196608\ns_mul_i32 s17, s2, 49152")
    f = " nt" if nt else ""
    L.append(stamp(1))
    for i in range(60):
        j = i % nbuf
        if i >= nbuf: L.append(f"s_waitcnt vmcnt({nbuf-1})")
        L.append(f"s_add_u32 m0, s18, {j*4096}\ns_nop 0")
        if i < 12: L.append(f"buffer_load_dwordx4 v1, s[12:15], s17 offen{f} lds\ns_add_u32 s17, s17, 4096")
        else: L.append(f"buffer_load_dwordx4 v1, s[8:11], s16 offen{f} lds\ns_add_u32 s16, s16, 4096")
        if i == nbuf - 1: L.append(stamp(2))
    L.append("s_waitcnt vmcnt(0)")
    L.append(stamp(3))
    L.append(stamp_out(4))
    L.append("L_done:\ns_endpgm")
    return "\n".join(L)

if __name__ == '__main__':
    build('e1.s', ["; @launch grid=(256,1,1) block=(256,1,1) lds=0"], [empty(N)], [desc(N)])
    build('e2.s', ["; @launch kernel=e_kernel grid=(256,1,1) block=(256,1,1) lds=0"]*2, [empty('e_kernel')], [desc('e_kernel')])
    build('e3.s', ["; @launch kernel=e_kernel grid=(256,1,1) block=(256,1,1) lds=0"]*3, [empty('e_kernel')], [desc('e_kernel')])
    for nb in (12, 24, 36):
        build(f'sr{nb}.s', ["; @launch grid=(256,1,1) block=(256,1,1) lds=160000"], [stream_reg(N, nb)], [desc(N, 256)])
        build(f'sl{nb}.s', ["; @launch grid=(256,1,1) block=(256,1,1) lds=160000"], [stream_lds(N, nb)], [desc(N, 256)])
        build(f'sln{nb}.s', ["; @launch grid=(256,1,1) block=(256,1,1) lds=160000"], [stream_lds(N, nb, True)], [desc(N, 256)])
```

```python
from mb1 import *
def k(name, big, pat, iters=40):
    L = [head(name), stamp(0)]
    L.append("s_cmp_ge_u32 s2, 256\ns_cbranch_scc1 L_done")
    L.append("s_load_dwordx2 s[8:9], s[0:1], 8\ns_waitcnt lgkmcnt(0)\ns_mov_b32 s10, 50331648\ns_mov_b32 s11, 0x20000\nv_lshlrev_b32 v1, 4, v0\ns_mul_i32 s16, s2, 65536")
    for i in range(16):
        L.append(f"buffer_load_dwordx4 v[{16+4*i}:{19+4*i}], v1, s[8:11], s16 offen\ns_add_u32 s16, s16, 4096")
    L.append("s_waitcnt vmcnt(0)\ns_barrier\ns_mov_b32 s30, 0")
    L.append(stamp(1))
    L.append("s_memtime s[40:41]")
    L.append(".p2align 6\nL_loop:")
    if big:
        for u in range(2):
            for ct in range(3):
                for m in range(2):
                    a = 16 + 4 * (3 * u + ct); b = 48 + 4 * (2 * u + m); c = 128 + 16 * (2 * ct + m)
                    L.append(f"v_mfma_f32_32x32x16_bf16 v[{c}:{c+15}], v[{a}:{a+3}], v[{b}:{b+3}], v[{c}:{c+15}]")
    else:
        if pat == 'stat':
            order = [(j, m) for j in range(6) for m in range(4)]
        else:
            order = [(i % 6, (i + i // 6) % 4) for i in range(24)]
        for j, m in order:
            a = 16 + 4 * j; b = 48 + 4 * m; c = 128 + 4 * (6 * m + j)
            L.append(f"v_mfma_f32_16x16x32_bf16 v[{c}:{c+3}], v[{a}:{a+3}], v[{b}:{b+3}], v[{c}:{c+3}]")
    L.append(f"s_add_u32 s30, s30, 1\ns_cmp_lt_u32 s30, {iters}\ns_cbranch_scc1 L_loop")
    L.append(stamp(2))
    L.append("s_memtime s[42:43]\ns_waitcnt lgkmcnt(0)\ns_sub_u32 s38, s42, s40\ns_add_u32 s38, s38, s32\ns_addc_u32 s39, s33, 0")
    L.append(stamp_out(4))
    L.append("L_done:\ns_endpgm")
    return "\n".join(L)
if __name__ == '__main__':
    ln = ["; @launch grid=(256,1,1) block=(256,1,1) lds=160000"]
    D = [desc(N, 256, sg=64)]
    build('pw_16s.s', ln, [k(N, False, 'stat')], D); build('pw_16r.s', ln, [k(N, False, 'rot')], D); build('pw_32.s', ln, [k(N, True, '')], D)
```
